```python
import torch

def _softmax(x, axis=-1):
    return torch.softmax(x, dim=axis)
def _gelu(x):
    return torch.nn.functional.gelu(x, approximate="tanh")
def _silu(x):
    return torch.nn.functional.silu(x)
def _sigmoid(x):
    return torch.sigmoid(x)
def _layernorm(x, axis=-1, eps=1e-5):
    m = x.mean(dim=axis, keepdim=True)
    v = x.var(dim=axis, keepdim=True, unbiased=False)
    return (x - m) / torch.sqrt(v + eps)
def _scatter_add(tgt, idx, src, axis=0):
    return tgt.clone().index_add_(axis, idx, src)
def _segment_sum(src, seg, n):
    out = torch.zeros((n,) + src.shape[1:], dtype=src.dtype)
    return out.index_add_(0, seg, src)
def _pad(x, pw):
    flat = tuple(v for pair in reversed(pw) for v in pair)
    return torch.nn.functional.pad(x, flat)

kernel_name = 'standalone__paged_block_table_kv_pagedattention__decode'

def setup_inputs():

    _w = (lambda a: (lambda t: t.to(torch.bfloat16) if t.is_floating_point() else t)(torch.as_tensor(a)))
    B, Hq, Hkv, Sq, Skv, D = 2, 32, 32, 1, 8192, 128
    bs = 16
    nbps = max(1, Skv // bs)
    num_phys = B * nbps + 4
    bt = torch.randperm(num_phys)[: B * nbps].reshape(B, nbps).to(torch.int64)
    cl = (nbps * bs - (torch.arange(1, B + 1, dtype=torch.int64) * 2654435761) % max(1, nbps * bs // 2)).to(torch.int64)
    return {
        "q": _w((lambda *s: torch.randn(*s, dtype=torch.bfloat16) * 0.8)(B, Hq, Sq, D)),
        "k_cache": _w((lambda *s: torch.randn(*s, dtype=torch.bfloat16) * 0.8)(num_phys, bs, Hkv, D)),
        "v_cache": _w((lambda *s: torch.randn(*s, dtype=torch.bfloat16) * 0.05)(num_phys, bs, Hkv, D)),
        "block_table": _w(bt),
        "context_lens": _w(cl),
    }

def reference(q, k_cache, v_cache, block_table, context_lens):
    B, Hq, Sq, D = q.shape
    bs = k_cache.shape[1]
    Hkv = k_cache.shape[2]
    nbps = block_table.shape[1]
    Skv = nbps * bs
    bt = block_table.reshape(-1)
    k = (lambda x, *d: x.permute(*d))(k_cache[bt].reshape(B, Skv, Hkv, D), 0, 2, 1, 3)
    v = (lambda x, *d: x.permute(*d))(v_cache[bt].reshape(B, Skv, Hkv, D), 0, 2, 1, 3)
    g = Hq // Hkv
    qg = q.reshape(B, Hkv, g, Sq, D)
    scores = torch.einsum("bhgqd,bhkd->bhgqk", qg, k) * (D ** -0.5)
    pos = torch.arange(Skv)
    msk = pos[None, :] < context_lens[:, None]
    scores = torch.where(msk[:, None, None, None, :], scores, -1e9)
    p = _softmax(scores, axis=-1)
    out = torch.einsum("bhgqk,bhkd->bhgqd", p, v)
    return out.reshape(B, Hq, Sq, D)
```

```python
import sys, struct, math

HEADER = """; Kernarg layout for this problem (64 bytes, ptrs only, base s[0:1]):
;
"""

KV_BYTES = 1028 * 131072
ML_OFF = 8 << 20
WS_BYTES = 16 << 20
SCALE_LOG2E = (128 ** -0.5) * math.log2(math.e)


def f32bits(x):
    return struct.unpack('<I', struct.pack('<f', x))[0]


class Asm:
    def __init__(self):
        self.lines = []
        self.nlab = 0

    def __call__(self, s):
        for l in s.strip('\n').split('\n'):
            self.lines.append('    ' + l.strip())

    def label(self, name):
        self.lines.append(name + ':')

    def newlab(self, base):
        self.nlab += 1
        return f"L_{base}_{self.nlab}"

    def text(self):
        return '\n'.join(self.lines) + '\n'


def log2i(x):
    r = int(math.log2(x))
    assert 1 << r == x
    return r


def emit_partition(a, NS, T):
    lt = log2i(T)
    a(f"""
    s_cmp_lt_i32 s40, 1
    s_cselect_b32 s42, 8192, s40
    s_min_u32 s42, s42, 8192
    s_cmp_lt_i32 s41, 1
    s_cselect_b32 s43, 8192, s41
    s_min_u32 s43, s43, 8192
    s_add_u32 s44, s42, {T-1}
    s_lshr_b32 s44, s44, {lt}
    s_add_u32 s45, s43, {T-1}
    s_lshr_b32 s45, s45, {lt}
    s_add_u32 s82, s44, s45
    v_cvt_f32_u32 v3, s44
    v_cvt_f32_u32 v4, s82
    v_rcp_f32 v4, v4
    s_nop 0
    v_mul_f32 v3, v3, v4
    v_mul_f32 v3, 0x{f32bits(float(NS)):08x}, v3
    v_add_f32 v3, 0.5, v3
    v_cvt_u32_f32 v3, v3
    s_nop 0
    v_readfirstlane_b32 s46, v3
    s_nop 3
    s_max_u32 s46, s46, 1
    s_min_u32 s46, s46, {NS-1}
    """)


def gen(NWG=256, NW=16, HGW=8, T=4, ldf="", usepk=False):
    NS = NWG * HGW // 8
    WPS = 8 // HGW
    P = NW // HGW
    lt = log2i(T)
    TPB = 16 // T
    NTH = NW * 64
    a = Asm()

    vKA = 36
    vKB = vKA + 4 * T
    vVA = vKB + 4 * T
    vVB = vVA + 4 * T
    nvgpr = vVB + 4 * T
    sA, sB = 66, 74
    vS = 20
    vT = 28

    lds_ml = NW * 2048
    lds_bytes = lds_ml + NW * 4 * 8

    a.label("pa_main_kernel")
    a(f"""
    s_cmp_ge_u32 s2, {NWG}
    s_cbranch_scc1 L_main_end
    s_load_dwordx4 s[4:7], s[0:1], 0
    s_load_dwordx4 s[8:11], s[0:1], 16
    s_load_dwordx4 s[12:15], s[0:1], 32
    s_load_dwordx4 s[16:19], s[0:1], 48
    v_lshrrev_b32 v3, 6, v0
    v_and_b32 v1, 63, v0
    v_readfirstlane_b32 s56, v3
    v_lshlrev_b32 v2, 2, v1
    v_lshlrev_b32 v1, 4, v1
    s_waitcnt lgkmcnt(0)
    s_load_dwordx2 s[40:41], s[12:13], 0
    s_mov_b32 s20, s6
    s_and_b32 s21, s7, 0xffff
    s_mov_b32 s22, 0x{KV_BYTES:x}
    s_mov_b32 s23, 0x00020000
    s_mov_b32 s24, s8
    s_and_b32 s25, s9, 0xffff
    s_mov_b32 s26, 0x{KV_BYTES:x}
    s_mov_b32 s27, 0x00020000
    s_mov_b32 s28, s4
    s_and_b32 s29, s5, 0xffff
    s_mov_b32 s30, 16384
    s_mov_b32 s31, 0x00020000
    s_mov_b32 s32, s10
    s_and_b32 s33, s11, 0xffff
    s_mov_b32 s34, 4096
    s_mov_b32 s35, 0x00020000
    s_mov_b32 s36, s18
    s_and_b32 s37, s19, 0xffff
    s_mov_b32 s38, 0x{WS_BYTES:x}
    s_mov_b32 s39, 0x00020000
    s_mov_b32 s60, 0x{f32bits(SCALE_LOG2E):08x}
    s_lshr_b32 s47, s2, {log2i(WPS)}
    s_and_b32 s48, s2, {WPS-1}
    s_and_b32 s58, s56, {HGW-1}
    s_lshr_b32 s57, s56, {log2i(HGW)}
    s_lshl_b32 s82, s48, {log2i(HGW)}
    s_add_u32 s58, s58, s82
    s_waitcnt lgkmcnt(0)
    """)
    emit_partition(a, NS, T)
    a(f"""
    s_cmp_ge_u32 s47, s46
    s_cselect_b32 s49, 1, 0
    s_cselect_b32 s82, s46, 0
    s_cselect_b32 s52, s45, s44
    s_cselect_b32 s53, s43, s42
    s_cselect_b32 s83, s41, s40
    s_sub_u32 s50, s47, s82
    s_sub_u32 s84, {NS}, s46
    s_cmp_ge_u32 s47, s46
    s_cselect_b32 s51, s84, s46
    s_cmp_lt_i32 s83, 1
    s_cselect_b32 s30, 0, 16384
    v_cvt_f32_u32 v3, s52
    v_cvt_f32_u32 v4, s51
    v_rcp_f32 v4, v4
    s_add_u32 s84, s50, 1
    v_cvt_f32_u32 v5, s50
    v_cvt_f32_u32 v6, s84
    v_mul_f32 v3, v3, v4
    v_mul_f32 v5, v5, v3
    v_mul_f32 v6, v6, v3
    v_cvt_u32_f32 v5, v5
    v_cvt_u32_f32 v6, v6
    s_nop 0
    v_readfirstlane_b32 s54, v5
    v_readfirstlane_b32 s55, v6
    s_nop 3
    s_min_u32 s54, s54, s52
    s_min_u32 s55, s55, s52
    s_cmp_eq_u32 s84, s51
    s_cselect_b32 s55, s52, s55
    s_lshr_b32 s59, s54, {log2i(TPB)}
    s_lshl_b32 s82, s49, 9
    s_add_u32 s82, s82, s59
    s_lshl_b32 s82, s82, 2
    buffer_load_dword v2, v2, s[32:35], s82 offen
    s_lshl_b32 s82, s49, 13
    s_lshl_b32 s83, s58, 10
    s_add_u32 s82, s82, s83
    buffer_load_dwordx4 v[4:7], v1, s[28:31], s82 offen
    s_lshl_b32 s61, s55, {lt}
    s_min_u32 s61, s61, s53
    s_add_u32 s64, s54, s57
    s_mov_b32 s63, s64
    s_sub_u32 s62, s55, s54
    s_sub_u32 s62, s62, s57
    s_add_i32 s62, s62, {2*P-1}
    s_max_i32 s62, s62, 0
    s_lshr_b32 s62, s62, {log2i(2*P)}
    s_lshl_b32 s65, s58, 10
    v_mov_b32 v8, 0
    v_mov_b32 v9, 0
    v_mov_b32 v10, 0
    v_mov_b32 v11, 0
    v_mov_b32 v12, 0
    v_mov_b32 v13, 0
    v_mov_b32 v14, 0
    v_mov_b32 v15, 0
    v_mov_b32 v16, 0xf149f2ca
    v_mov_b32 v17, 0
    s_waitcnt vmcnt(1)
    """)

    def calc_off(sO):
        a(f"""
        s_lshr_b32 s82, s63, {log2i(TPB)}
        s_sub_u32 s82, s82, s59
        s_and_b32 s82, s82, 63
        v_readlane_b32 s83, v2, s82
        s_and_b32 s84, s63, {TPB-1}
        s_lshl_b32 s84, s84, {13+lt}
        s_add_u32 s84, s84, s65
        s_lshl_b32 s83, s83, 17
        s_add_u32 s83, s83, s84
        s_cmp_lt_u32 s63, s55
        s_cselect_b32 s{sO}, s83, 0x{KV_BYTES:x}
        s_cselect_b32 s84, 8192, 0
        """)
        for t in range(1, T):
            a(f"s_add_u32 s{sO+t}, s{sO+t-1}, s84")

    def issue(vB, srd, sO):
        for t in range(T):
            a(f"buffer_load_dwordx4 v[{vB+4*t}:{vB+4*t+3}], v1, s[{srd}:{srd+3}], s{sO+t} offen {ldf}")

    calc_off(sA)
    issue(vKA, 20, sA)
    issue(vVA, 24, sA)
    a(f"s_add_u32 s63, s63, {P}")
    calc_off(sB)
    issue(vKB, 20, sB)
    issue(vVB, 24, sB)
    a(f"""
    s_add_u32 s63, s63, {P}
    s_cmp_eq_u32 s62, 0
    s_cbranch_scc1 L_loop_done
    """)

    def half(vK, vV, sO):
        a(f"s_waitcnt vmcnt({3*T})")
        for i in range(4):
            for t in range(T):
                if i == 0:
                    a(f"v_dot2_f32_bf16 v{vS+t}, v{vK+4*t+i}, v{4+i}, 0")
                else:
                    a(f"v_dot2_f32_bf16 v{vS+t}, v{vK+4*t+i}, v{4+i}, v{vS+t}")
        calc_off(sO)
        issue(vK, 20, sO)
        for r in (8, 4, 2, 1):
            for t in range(T):
                a(f"v_add_f32_dpp v{vS+t}, v{vS+t}, v{vS+t} row_ror:{r} row_mask:0xf bank_mask:0xf")
            if T < 3:
                a("s_nop 1")
        lab = a.newlab("nomask")
        a(f"""
        s_lshl_b32 s82, s64, {lt}
        s_sub_i32 s82, s61, s82
        """)
        for t in range(T - 1, -1, -1):
            a(f"""
            s_cmp_gt_i32 s82, {t}
            s_cbranch_scc1 {lab}
            v_mov_b32 v{vS+t}, 0xff800000
            """)
        a.label(lab)
        if T == 2:
            a(f"v_max3_f32 v18, v{vS}, v{vS+1}, v16")
        else:
            a(f"v_max3_f32 v18, v{vS}, v{vS+1}, v16")
            for t in range(2, T, 2):
                a(f"v_max3_f32 v18, v{vS+t}, v{vS+t+1}, v18")
        a(f"""
        v_mul_f32 v3, s60, v18
        v_fma_f32 v19, v16, s60, -v3
        """)
        for t in range(T):
            a(f"v_fma_f32 v{vS+t}, v{vS+t}, s60, -v3")
        a("v_exp_f32 v19, v19")
        for t in range(T):
            a(f"v_exp_f32 v{vS+t}, v{vS+t}")
        a("v_mov_b32 v16, v18")
        for i in range(8):
            a(f"v_mul_f32 v{8+i}, v19, v{8+i}")
        a(f"v_mul_f32 v17, v19, v17")
        for t in range(T):
            a(f"v_add_f32 v17, v17, v{vS+t}")
        a(f"s_waitcnt vmcnt({3*T})")
        for t in range(T):
            for i in range(4):
                a(f"v_lshlrev_b32 v{vT+2*i}, 16, v{vV+4*t+i}")
                a(f"v_and_b32 v{vT+2*i+1}, 0xffff0000, v{vV+4*t+i}")
            if usepk:
                p = vS + t
                for i in range(4):
                    if p % 2 == 0:
                        a(f"v_pk_fma_f32 v[{8+2*i}:{9+2*i}], v[{vT+2*i}:{vT+2*i+1}], v[{p}:{p+1}], v[{8+2*i}:{9+2*i}] op_sel_hi:[1,0,1]")
                    else:
                        a(f"v_pk_fma_f32 v[{8+2*i}:{9+2*i}], v[{vT+2*i}:{vT+2*i+1}], v[{p-1}:{p}], v[{8+2*i}:{9+2*i}] op_sel:[0,1,0] op_sel_hi:[1,1,1]")
            else:
                for i in range(8):
                    a(f"v_fmac_f32 v{8+i}, v{vS+t}, v{vT+i}")
        issue(vV, 24, sO)
        a(f"""
        s_add_u32 s63, s63, {P}
        s_add_u32 s64, s64, {P}
        """)

    a.label("L_loop")
    half(vKA, vVA, sA)
    half(vKB, vVB, sB)
    a(f"""
    s_sub_u32 s62, s62, 1
    s_cmp_lg_u32 s62, 0
    s_cbranch_scc1 L_loop
    """)
    a.label("L_loop_done")
    NOUT = HGW * 512
    EPT = max(1, NOUT // NTH)
    NACT = NOUT // EPT
    a(f"""
    s_waitcnt vmcnt(0)
    v_lshlrev_b32 v3, 1, v1
    s_lshl_b32 s82, s56, 11
    v_add_u32 v3, s82, v3
    ds_write_b128 v3, v[8:11]
    ds_write_b128 v3, v[12:15] offset:16
    v_lshrrev_b32 v3, 8, v1
    v_lshlrev_b32 v3, 3, v3
    s_lshl_b32 s82, s56, 5
    s_add_u32 s82, s82, {lds_ml}
    v_add_u32 v3, s82, v3
    ds_write_b64 v3, v[16:17]
    s_waitcnt lgkmcnt(0)
    s_barrier
    """)
    if NACT < NTH:
        a(f"""
        s_cmp_ge_u32 s56, {NACT//64}
        s_cbranch_scc1 L_main_end
        """)
    vM = 20
    vO = 20 + 2 * P
    vO += vO % 2
    if EPT == 4:
        vO = (vO + 3) // 4 * 4
    assert vO + P * EPT <= nvgpr
    a(f"""
    v_lshlrev_b32 v3, {log2i(EPT)+2}, v0
    v_lshrrev_b32 v4, 9, v3
    v_lshlrev_b32 v5, 3, v4
    v_add_u32 v5, {lds_ml}, v5
    """)
    for p in range(P):
        a(f"ds_read_b64 v[{vM+2*p}:{vM+2*p+1}], v5 offset:{p*HGW*32}")
    for p in range(P):
        r = vO + p * EPT
        if EPT == 4:
            a(f"ds_read_b128 v[{r}:{r+3}], v3 offset:{p*HGW*2048}")
        elif EPT == 2:
            a(f"ds_read_b64 v[{r}:{r+1}], v3 offset:{p*HGW*2048}")
        else:
            a(f"ds_read_b32 v{r}, v3 offset:{p*HGW*2048}")
    a(f"s_waitcnt lgkmcnt({min(P,15)})")
    a(f"v_mov_b32 v16, v{vM}")
    for p in range(1, P):
        a(f"v_max_f32 v16, v16, v{vM+2*p}")
    a("v_mul_f32 v6, s60, v16")
    for p in range(P):
        a(f"v_fma_f32 v{vM+2*p}, v{vM+2*p}, s60, -v6")
    for p in range(P):
        a(f"v_exp_f32 v{vM+2*p}, v{vM+2*p}")
    a("s_nop 0")
    a(f"v_mul_f32 v17, v{vM}, v{vM+1}")
    for p in range(1, P):
        a(f"v_fmac_f32 v17, v{vM+2*p}, v{vM+2*p+1}")
    a("s_waitcnt lgkmcnt(0)")
    for e in range(EPT):
        a(f"v_mul_f32 v{8+e}, v{vM}, v{vO+e}")
    for p in range(1, P):
        for e in range(EPT):
            a(f"v_fmac_f32 v{8+e}, v{vM+2*p}, v{vO+p*EPT+e}")
    a(f"""
    s_lshl_b32 s82, s47, 14
    s_lshl_b32 s83, s48, {log2i(HGW)+11}
    s_add_u32 s82, s82, s83
    """)
    if EPT == 4:
        a("buffer_store_dwordx4 v[8:11], v3, s[36:39], s82 offen")
    elif EPT == 2:
        a("buffer_store_dwordx2 v[8:9], v3, s[36:39], s82 offen")
    else:
        a("buffer_store_dword v8, v3, s[36:39], s82 offen")
    a(f"""
    v_and_b32 v5, 511, v3
    v_cmp_eq_u32 vcc, 0, v5
    s_lshl_b32 s83, s48, {log2i(HGW)+2}
    v_add_u32 v4, s83, v4
    v_mul_u32_u24 v4, {NS*8}, v4
    s_lshl_b32 s82, s47, 3
    s_add_u32 s82, s82, 0x{ML_OFF:x}
    s_and_saveexec_b64 s[84:85], vcc
    s_cbranch_execz L_main_end
    buffer_store_dwordx2 v[16:17], v4, s[36:39], s82 offen
    """)
    a.label("L_main_end")
    a("s_endpgm")

    NG = 16
    NI = (NS - 1 + NG - 1) // NG
    a.lines.append(".p2align 8")
    a.label("pa_merge_kernel")
    a(f"""
    s_cmp_ge_u32 s2, 64
    s_cbranch_scc1 L_mrg_end
    s_load_dwordx4 s[12:15], s[0:1], 32
    s_load_dwordx4 s[16:19], s[0:1], 48
    v_lshrrev_b32 v2, 5, v0
    v_and_b32 v1, 31, v0
    s_waitcnt lgkmcnt(0)
    s_load_dwordx2 s[40:41], s[12:13], 0
    s_mov_b32 s36, s18
    s_and_b32 s37, s19, 0xffff
    s_mov_b32 s38, 0x{WS_BYTES:x}
    s_mov_b32 s39, 0x00020000
    s_mov_b32 s28, s14
    s_and_b32 s29, s15, 0xffff
    s_mov_b32 s30, 16384
    s_mov_b32 s31, 0x00020000
    s_mov_b32 s60, 0x{f32bits(SCALE_LOG2E):08x}
    s_lshr_b32 s49, s2, 5
    s_and_b32 s58, s2, 31
    s_waitcnt lgkmcnt(0)
    """)
    emit_partition(a, NS, T)
    a(f"""
    s_sub_u32 s84, {NS}, s46
    s_cmp_eq_u32 s49, 0
    s_cselect_b32 s47, 0, s46
    s_cselect_b32 s51, s46, s84
    """)
    vML = 8
    vOO = vML + 2 * NI
    vOO = (vOO + 3) // 4 * 4
    a(f"""
    v_lshlrev_b32 v3, 14, v2
    v_lshl_add_u32 v3, v1, 4, v3
    v_lshlrev_b32 v4, 3, v2
    s_lshl_b32 s82, s47, 14
    s_lshl_b32 s83, s58, 9
    s_add_u32 s82, s82, s83
    s_mul_i32 s83, s58, {NS*8}
    s_lshl_b32 s84, s47, 3
    s_add_u32 s83, s83, s84
    s_add_u32 s83, s83, 0x{ML_OFF:x}
    v_mov_b32 v6, 0x{WS_BYTES:x}
    """)
    for i in range(NI):
        a(f"""
        v_add_u32 v5, {NG*i}, v2
        v_cmp_gt_u32 vcc, s51, v5
        v_add_u32 v5, {NG*i*16384}, v3
        v_add_u32 v7, {NG*i*8}, v4
        v_cndmask_b32 v5, v6, v5, vcc
        v_cndmask_b32 v7, v6, v7, vcc
        buffer_load_dwordx2 v[{vML+2*i}:{vML+2*i+1}], v7, s[36:39], s83 offen
        buffer_load_dwordx4 v[{vOO+4*i}:{vOO+4*i+3}], v5, s[36:39], s82 offen
        """)
    a("s_waitcnt vmcnt(0)")
    for i in range(NI):
        a(f"""
        v_add_u32 v5, {NG*i}, v2
        v_cmp_gt_u32 vcc, s51, v5
        v_mov_b32 v7, 0xf149f2ca
        s_nop 0
        v_cndmask_b32 v{vML+2*i}, v7, v{vML+2*i}, vcc
        """)
    R = vOO + 4 * NI
    R = (R + 3) // 4 * 4
    a(f"v_mov_b32 v{R+4}, v{vML}")
    for i in range(1, NI):
        a(f"v_max_f32 v{R+4}, v{R+4}, v{vML+2*i}")
    a(f"v_mul_f32 v6, s60, v{R+4}")
    for i in range(NI):
        a(f"v_fma_f32 v{vML+2*i}, v{vML+2*i}, s60, -v6")
    for i in range(NI):
        a(f"v_exp_f32 v{vML+2*i}, v{vML+2*i}")
    a("s_nop 0")
    a(f"v_mul_f32 v{R+5}, v{vML}, v{vML+1}")
    for e in range(4):
        a(f"v_mul_f32 v{R+e}, v{vML}, v{vOO+e}")
    for i in range(1, NI):
        a(f"v_fmac_f32 v{R+5}, v{vML+2*i}, v{vML+2*i+1}")
        for e in range(4):
            a(f"v_fmac_f32 v{R+e}, v{vML+2*i}, v{vOO+4*i+e}")
    a(f"""
    v_lshlrev_b32 v3, 4, v0
    ds_write_b128 v3, v[{R}:{R+3}]
    v_lshlrev_b32 v4, 3, v2
    ds_write_b64 v4, v[{R+4}:{R+5}] offset:8192
    s_waitcnt lgkmcnt(0)
    s_barrier
    v_cmp_gt_u32 vcc, 32, v0
    s_and_saveexec_b64 s[84:85], vcc
    s_cbranch_execz L_mrg_end
    v_mov_b32 v4, 0
    """)
    vM2 = 8
    vO2 = vM2 + 2 * NG
    for g in range(NG):
        a(f"ds_read_b64 v[{vM2+2*g}:{vM2+2*g+1}], v4 offset:{8192+8*g}")
    for g in range(NG):
        a(f"ds_read_b128 v[{vO2+4*g}:{vO2+4*g+3}], v3 offset:{512*g}")
    a("s_waitcnt lgkmcnt(0)")
    a(f"v_mov_b32 v5, v{vM2}")
    for g in range(1, NG):
        a(f"v_max_f32 v5, v5, v{vM2+2*g}")
    a(f"v_mul_f32 v6, s60, v5")
    for g in range(NG):
        a(f"v_fma_f32 v{vM2+2*g}, v{vM2+2*g}, s60, -v6")
    for g in range(NG):
        a(f"v_exp_f32 v{vM2+2*g}, v{vM2+2*g}")
    a("s_nop 0")
    a(f"v_mul_f32 v7, v{vM2}, v{vM2+1}")
    for e in range(4):
        a(f"v_mul_f32 v{vO2+e}, v{vM2}, v{vO2+e}")
    for g in range(1, NG):
        a(f"v_fmac_f32 v7, v{vM2+2*g}, v{vM2+2*g+1}")
        for e in range(4):
            a(f"v_fmac_f32 v{vO2+e}, v{vM2+2*g}, v{vO2+4*g+e}")
    a(f"""
    v_rcp_f32 v7, v7
    s_nop 0
    v_mul_f32 v{vO2}, v{vO2}, v7
    v_mul_f32 v{vO2+1}, v{vO2+1}, v7
    v_mul_f32 v{vO2+2}, v{vO2+2}, v7
    v_mul_f32 v{vO2+3}, v{vO2+3}, v7
    v_cvt_pk_bf16_f32 v4, v{vO2}, v{vO2+1}
    v_cvt_pk_bf16_f32 v5, v{vO2+2}, v{vO2+3}
    v_lshlrev_b32 v3, 3, v0
    s_lshl_b32 s82, s2, 8
    buffer_store_dwordx2 v[4:5], v3, s[28:31], s82 offen
    """)
    a.label("L_mrg_end")
    a("s_endpgm")
    nv2 = max(R + 6, vO2 + 4 * NG)

    def kd(name, nv):
        nv = (nv + 3) // 4 * 4
        return f""".amdhsa_kernel {name}
  .amdhsa_next_free_vgpr {nv}
  .amdhsa_next_free_sgpr 96
  .amdhsa_accum_offset {nv}
  .amdhsa_group_segment_fixed_size 0
  .amdhsa_kernarg_size 64
  .amdhsa_user_sgpr_count 2
  .amdhsa_user_sgpr_kernarg_segment_ptr 1
  .amdhsa_system_sgpr_workgroup_id_x 1
.end_amdhsa_kernel
"""

    out = HEADER
    out += f"; config: NWG={NWG} NW={NW} HGW={HGW} T={T} ldf='{ldf}' usepk={usepk}\n"
    out += f"; @launch kernel=pa_main_kernel grid=({NWG},1,1) block=({NTH},1,1) lds={lds_bytes}\n"
    out += f"; @launch kernel=pa_merge_kernel grid=(64,1,1) block=(512,1,1) lds={8192+128}\n"
    out += """.amdgcn_target "amdgcn-amd-amdhsa--gfx950"
.text
.globl pa_main_kernel
.globl pa_merge_kernel
.type pa_main_kernel,@function
.type pa_merge_kernel,@function
.p2align 8
"""
    out += a.text()
    out += """.section .rodata,"a"
.p2align 6
"""
    out += kd("pa_main_kernel", nvgpr)
    out += ".p2align 6\n"
    out += kd("pa_merge_kernel", nv2)
    return out


if __name__ == "__main__":
    import argparse
    ap = argparse.ArgumentParser()
    ap.add_argument("-o", default="standalone__paged_block_table_kv_pagedattention__decode.s")
    ap.add_argument("--NWG", type=int, default=256)
    ap.add_argument("--NW", type=int, default=16)
    ap.add_argument("--HGW", type=int, default=8)
    ap.add_argument("--T", type=int, default=4)
    ap.add_argument("--ldf", default="")
    ap.add_argument("--usepk", action="store_true")
    args = ap.parse_args()
    s = gen(args.NWG, args.NW, args.HGW, args.T, args.ldf, args.usepk)
    open(args.o, "w").write(s)
```

```python
import sys, struct, math

HEADER = """; Kernarg layout for this problem (64 bytes, ptrs only, base s[0:1]):
;
"""

KV_BYTES = 1028 * 131072
ML_OFF = 8 << 20
WS_BYTES = 16 << 20
SCALE_LOG2E = (128 ** -0.5) * math.log2(math.e)


def f32bits(x):
    return struct.unpack('<I', struct.pack('<f', x))[0]


class Asm:
    def __init__(self):
        self.lines = []
        self.nlab = 0

    def __call__(self, s):
        for l in s.strip('\n').split('\n'):
            self.lines.append('    ' + l.strip())

    def label(self, name):
        self.lines.append(name + ':')

    def newlab(self, base):
        self.nlab += 1
        return f"L_{base}_{self.nlab}"

    def text(self):
        return '\n'.join(self.lines) + '\n'


def log2i(x):
    r = int(math.log2(x))
    assert 1 << r == x
    return r


def emit_partition(a, NS, T):
    lt = log2i(T)
    a(f"""
    s_cmp_lt_i32 s40, 1
    s_cselect_b32 s42, 8192, s40
    s_min_u32 s42, s42, 8192
    s_cmp_lt_i32 s41, 1
    s_cselect_b32 s43, 8192, s41
    s_min_u32 s43, s43, 8192
    s_add_u32 s44, s42, {T-1}
    s_lshr_b32 s44, s44, {lt}
    s_add_u32 s45, s43, {T-1}
    s_lshr_b32 s45, s45, {lt}
    s_add_u32 s82, s44, s45
    v_cvt_f32_u32 v3, s44
    v_cvt_f32_u32 v4, s82
    v_rcp_f32 v4, v4
    s_nop 0
    v_mul_f32 v3, v3, v4
    v_mul_f32 v3, 0x{f32bits(float(NS)):08x}, v3
    v_add_f32 v3, 0.5, v3
    v_cvt_u32_f32 v3, v3
    s_nop 0
    v_readfirstlane_b32 s46, v3
    s_nop 3
    s_max_u32 s46, s46, 1
    s_min_u32 s46, s46, {NS-1}
    """)


def emit_fused_tail(a, NS, NW, HGW, lds_bytes):
    NTH = NW * 64
    NHD = HGW * 4
    NG = NTH // (NHD * 32)
    NI = (NS - 1 + NG - 1) // NG
    lds_flag = lds_bytes
    a.label("L_pub_rest")
    a("s_mov_b64 exec, s[84:85]")
    a.label("L_pub_done")
    a(f"""
    s_waitcnt vmcnt(0)
    s_barrier
    s_mov_b32 s32, s16
    s_and_b32 s33, s17, 0xffff
    s_mov_b32 s34, 256
    s_mov_b32 s28, s14
    s_and_b32 s29, s15, 0xffff
    s_mov_b32 s30, 16384
    s_cmp_lg_u32 s56, 0
    s_cbranch_scc1 L_wait_flag
    s_lshl_b32 s82, s49, {log2i(8//HGW)}
    s_add_u32 s82, s82, s48
    s_lshl_b32 s82, s82, 2
    v_mov_b32 v3, 0
    v_mov_b32 v4, 1
    v_cmp_eq_u32 vcc, 0, v0
    s_and_saveexec_b64 s[84:85], vcc
    buffer_atomic_add v4, v3, s[32:35], s82 offen sc0
    s_waitcnt vmcnt(0)
    v_mov_b32 v3, {lds_flag}
    ds_write_b32 v3, v4
    s_waitcnt lgkmcnt(0)
    s_mov_b64 exec, s[84:85]
    """)
    a.label("L_wait_flag")
    a(f"""
    s_barrier
    v_mov_b32 v3, {lds_flag}
    ds_read_b32 v4, v3
    s_waitcnt lgkmcnt(0)
    v_readfirstlane_b32 s82, v4
    s_nop 3
    s_add_u32 s82, s82, 1
    s_cmp_lg_u32 s82, s51
    s_cbranch_scc1 L_main_end
    """)
    lh = log2i(NHD)
    vML = 8
    vOO = (vML + 2 * NI + 3) // 4 * 4
    a(f"""
    s_sub_u32 s47, s47, s50
    v_and_b32 v1, 31, v0
    v_bfe_u32 v2, v0, 5, {lh}
    v_lshrrev_b32 v3, {5+lh}, v0
    s_lshl_b32 s83, s48, {lh}
    v_add_u32 v2, s83, v2
    v_lshlrev_b32 v4, 14, v3
    v_lshl_add_u32 v4, v1, 4, v4
    v_lshl_add_u32 v4, v2, 9, v4
    v_mul_u32_u24 v5, {NS*8}, v2
    v_lshl_add_u32 v5, v3, 3, v5
    s_lshl_b32 s82, s47, 14
    s_lshl_b32 s83, s47, 3
    s_add_u32 s83, s83, 0x{ML_OFF:x}
    v_mov_b32 v6, 0x{WS_BYTES:x}
    """)
    tA, tB = vOO + 4 * NI, vOO + 4 * NI + 1
    for i in range(NI):
        a(f"""
        v_add_u32 v{tA}, {NG*i}, v3
        v_cmp_gt_u32 vcc, s51, v{tA}
        v_add_u32 v{tA}, {NG*i*16384}, v4
        v_add_u32 v{tB}, {NG*i*8}, v5
        v_cndmask_b32 v{tA}, v6, v{tA}, vcc
        v_cndmask_b32 v{tB}, v6, v{tB}, vcc
        buffer_load_dwordx2 v[{vML+2*i}:{vML+2*i+1}], v{tB}, s[36:39], s83 offen sc1
        buffer_load_dwordx4 v[{vOO+4*i}:{vOO+4*i+3}], v{tA}, s[36:39], s82 offen sc1
        """)
    a("s_waitcnt vmcnt(0)")
    for i in range(NI):
        a(f"""
        v_add_u32 v{tA}, {NG*i}, v3
        v_cmp_gt_u32 vcc, s51, v{tA}
        v_mov_b32 v7, 0xf149f2ca
        s_nop 0
        v_cndmask_b32 v{vML+2*i}, v7, v{vML+2*i}, vcc
        """)
    R = (vOO + 4 * NI + 2 + 3) // 4 * 4
    a(f"v_mov_b32 v{R+4}, v{vML}")
    for i in range(1, NI):
        a(f"v_max_f32 v{R+4}, v{R+4}, v{vML+2*i}")
    a(f"v_mul_f32 v6, s60, v{R+4}")
    for i in range(NI):
        a(f"v_fma_f32 v{vML+2*i}, v{vML+2*i}, s60, -v6")
    for i in range(NI):
        a(f"v_exp_f32 v{vML+2*i}, v{vML+2*i}")
    a("s_nop 0")
    a(f"v_mul_f32 v{R+5}, v{vML}, v{vML+1}")
    for e in range(4):
        a(f"v_mul_f32 v{R+e}, v{vML}, v{vOO+e}")
    for i in range(1, NI):
        a(f"v_fmac_f32 v{R+5}, v{vML+2*i}, v{vML+2*i+1}")
        for e in range(4):
            a(f"v_fmac_f32 v{R+e}, v{vML+2*i}, v{vOO+4*i+e}")
    a(f"""
    v_lshlrev_b32 v4, 4, v0
    ds_write_b128 v4, v[{R}:{R+3}]
    v_lshrrev_b32 v5, 5, v0
    v_lshlrev_b32 v5, 3, v5
    ds_write_b64 v5, v[{R+4}:{R+5}] offset:16384
    s_waitcnt lgkmcnt(0)
    s_barrier
    s_cmp_ge_u32 s56, {NHD*32//64}
    s_cbranch_scc1 L_main_end
    """)
    vM2 = 8
    vO2 = (vM2 + 2 * NG + 3) // 4 * 4
    for g in range(NG):
        a(f"ds_read_b64 v[{vM2+2*g}:{vM2+2*g+1}], v5 offset:{16384+NHD*8*g}")
    for g in range(NG):
        a(f"ds_read_b128 v[{vO2+4*g}:{vO2+4*g+3}], v4 offset:{NHD*512*g}")
    a("s_waitcnt lgkmcnt(0)")
    a(f"v_mov_b32 v3, v{vM2}")
    for g in range(1, NG):
        a(f"v_max_f32 v3, v3, v{vM2+2*g}")
    a(f"v_mul_f32 v6, s60, v3")
    for g in range(NG):
        a(f"v_fma_f32 v{vM2+2*g}, v{vM2+2*g}, s60, -v6")
    for g in range(NG):
        a(f"v_exp_f32 v{vM2+2*g}, v{vM2+2*g}")
    a("s_nop 0")
    a(f"v_mul_f32 v7, v{vM2}, v{vM2+1}")
    for e in range(4):
        a(f"v_mul_f32 v{vO2+e}, v{vM2}, v{vO2+e}")
    for g in range(1, NG):
        a(f"v_fmac_f32 v7, v{vM2+2*g}, v{vM2+2*g+1}")
        for e in range(4):
            a(f"v_fmac_f32 v{vO2+e}, v{vM2+2*g}, v{vO2+4*g+e}")
    a(f"""
    v_rcp_f32 v7, v7
    s_nop 0
    v_mul_f32 v{vO2}, v{vO2}, v7
    v_mul_f32 v{vO2+1}, v{vO2+1}, v7
    v_mul_f32 v{vO2+2}, v{vO2+2}, v7
    v_mul_f32 v{vO2+3}, v{vO2+3}, v7
    v_cvt_pk_bf16_f32 v4, v{vO2}, v{vO2+1}
    v_cvt_pk_bf16_f32 v5, v{vO2+2}, v{vO2+3}
    v_lshlrev_b32 v3, 3, v0
    s_lshl_b32 s82, s49, 13
    s_lshl_b32 s83, s48, {lh+8}
    s_add_u32 s82, s82, s83
    buffer_store_dwordx2 v[4:5], v3, s[28:31], s82 offen
    """)
    return R + 6


def gen(NWG=256, NW=16, HGW=8, T=4, ldf="", usepk=False, stamp=False, fused=False):
    NS = NWG * HGW // 8
    WPS = 8 // HGW
    P = NW // HGW
    lt = log2i(T)
    TPB = 16 // T
    NTH = NW * 64
    a = Asm()
    MAIN = "standalone__paged_block_table_kv_pagedattention__decode_kernel" if fused else "pa_main_kernel"
    stf = "sc1" if fused else ""

    vKA = 36
    vKB = vKA + 4 * T
    vVA = vKB + 4 * T
    vVB = vVA + 4 * T
    nvgpr = vVB + 4 * T
    sA, sB = 66, 74
    vS = 20
    vT = 28

    lds_ml = NW * 2048
    lds_bytes = lds_ml + NW * 4 * 8

    a.label(MAIN)
    a(f"""
    s_cmp_ge_u32 s2, {NWG}
    s_cbranch_scc1 L_main_end
    {'s_memrealtime s[88:89]' if stamp else ''}
    s_load_dwordx4 s[4:7], s[0:1], 0
    s_load_dwordx4 s[8:11], s[0:1], 16
    s_load_dwordx4 s[12:15], s[0:1], 32
    s_load_dwordx4 s[16:19], s[0:1], 48
    v_lshrrev_b32 v3, 6, v0
    v_and_b32 v1, 63, v0
    v_readfirstlane_b32 s56, v3
    v_lshlrev_b32 v2, 2, v1
    v_lshlrev_b32 v1, 4, v1
    s_waitcnt lgkmcnt(0)
    s_load_dwordx2 s[40:41], s[12:13], 0
    s_mov_b32 s20, s6
    s_and_b32 s21, s7, 0xffff
    s_mov_b32 s22, 0x{KV_BYTES:x}
    s_mov_b32 s23, 0x00020000
    s_mov_b32 s24, s8
    s_and_b32 s25, s9, 0xffff
    s_mov_b32 s26, 0x{KV_BYTES:x}
    s_mov_b32 s27, 0x00020000
    s_mov_b32 s28, s4
    s_and_b32 s29, s5, 0xffff
    s_mov_b32 s30, 16384
    s_mov_b32 s31, 0x00020000
    s_mov_b32 s32, s10
    s_and_b32 s33, s11, 0xffff
    s_mov_b32 s34, 4096
    s_mov_b32 s35, 0x00020000
    s_mov_b32 s36, s18
    s_and_b32 s37, s19, 0xffff
    s_mov_b32 s38, 0x{WS_BYTES:x}
    s_mov_b32 s39, 0x00020000
    s_mov_b32 s60, 0x{f32bits(SCALE_LOG2E):08x}
    s_lshr_b32 s47, s2, {log2i(WPS)}
    s_and_b32 s48, s2, {WPS-1}
    s_and_b32 s58, s56, {HGW-1}
    s_lshr_b32 s57, s56, {log2i(HGW)}
    s_lshl_b32 s82, s48, {log2i(HGW)}
    s_add_u32 s58, s58, s82
    s_waitcnt lgkmcnt(0)
    """)
    emit_partition(a, NS, T)
    a(f"""
    s_cmp_ge_u32 s47, s46
    s_cselect_b32 s49, 1, 0
    s_cselect_b32 s82, s46, 0
    s_cselect_b32 s52, s45, s44
    s_cselect_b32 s53, s43, s42
    s_cselect_b32 s83, s41, s40
    s_sub_u32 s50, s47, s82
    s_sub_u32 s84, {NS}, s46
    s_cmp_ge_u32 s47, s46
    s_cselect_b32 s51, s84, s46
    s_cmp_lt_i32 s83, 1
    s_cselect_b32 s30, 0, 16384
    v_cvt_f32_u32 v3, s52
    v_cvt_f32_u32 v4, s51
    v_rcp_f32 v4, v4
    s_add_u32 s84, s50, 1
    v_cvt_f32_u32 v5, s50
    v_cvt_f32_u32 v6, s84
    v_mul_f32 v3, v3, v4
    v_mul_f32 v5, v5, v3
    v_mul_f32 v6, v6, v3
    v_cvt_u32_f32 v5, v5
    v_cvt_u32_f32 v6, v6
    s_nop 0
    v_readfirstlane_b32 s54, v5
    v_readfirstlane_b32 s55, v6
    s_nop 3
    s_min_u32 s54, s54, s52
    s_min_u32 s55, s55, s52
    s_cmp_eq_u32 s84, s51
    s_cselect_b32 s55, s52, s55
    s_lshr_b32 s59, s54, {log2i(TPB)}
    s_lshl_b32 s82, s49, 9
    s_add_u32 s82, s82, s59
    s_lshl_b32 s82, s82, 2
    buffer_load_dword v2, v2, s[32:35], s82 offen
    s_lshl_b32 s82, s49, 13
    s_lshl_b32 s83, s58, 10
    s_add_u32 s82, s82, s83
    buffer_load_dwordx4 v[4:7], v1, s[28:31], s82 offen
    s_lshl_b32 s61, s55, {lt}
    s_min_u32 s61, s61, s53
    s_add_u32 s64, s54, s57
    s_mov_b32 s63, s64
    s_sub_u32 s62, s55, s54
    s_sub_u32 s62, s62, s57
    s_add_i32 s62, s62, {2*P-1}
    s_max_i32 s62, s62, 0
    s_lshr_b32 s62, s62, {log2i(2*P)}
    s_lshl_b32 s65, s58, 10
    v_mov_b32 v8, 0
    v_mov_b32 v9, 0
    v_mov_b32 v10, 0
    v_mov_b32 v11, 0
    v_mov_b32 v12, 0
    v_mov_b32 v13, 0
    v_mov_b32 v14, 0
    v_mov_b32 v15, 0
    v_mov_b32 v16, 0xf149f2ca
    v_mov_b32 v17, 0
    s_waitcnt vmcnt(1)
    """)

    def calc_off(sO):
        a(f"""
        s_lshr_b32 s82, s63, {log2i(TPB)}
        s_sub_u32 s82, s82, s59
        s_and_b32 s82, s82, 63
        v_readlane_b32 s83, v2, s82
        s_and_b32 s84, s63, {TPB-1}
        s_lshl_b32 s84, s84, {13+lt}
        s_add_u32 s84, s84, s65
        s_lshl_b32 s83, s83, 17
        s_add_u32 s83, s83, s84
        s_cmp_lt_u32 s63, s55
        s_cselect_b32 s{sO}, s83, 0x{KV_BYTES:x}
        s_cselect_b32 s84, 8192, 0
        """)
        for t in range(1, T):
            a(f"s_add_u32 s{sO+t}, s{sO+t-1}, s84")

    def issue(vB, srd, sO):
        for t in range(T):
            a(f"buffer_load_dwordx4 v[{vB+4*t}:{vB+4*t+3}], v1, s[{srd}:{srd+3}], s{sO+t} offen {ldf}")

    calc_off(sA)
    issue(vKA, 20, sA)
    issue(vVA, 24, sA)
    a(f"s_add_u32 s63, s63, {P}")
    calc_off(sB)
    issue(vKB, 20, sB)
    issue(vVB, 24, sB)
    a(f"""
    s_add_u32 s63, s63, {P}
    {'s_memrealtime s[90:91]' if stamp else ''}
    {'s_waitcnt vmcnt(' + str(3*T) + ')' if stamp else ''}
    {'s_memrealtime s[92:93]' if stamp else ''}
    s_cmp_eq_u32 s62, 0
    s_cbranch_scc1 L_loop_done
    """)

    def half(vK, vV, sO):
        a(f"s_waitcnt vmcnt({3*T})")
        for i in range(4):
            for t in range(T):
                if i == 0:
                    a(f"v_dot2_f32_bf16 v{vS+t}, v{vK+4*t+i}, v{4+i}, 0")
                else:
                    a(f"v_dot2_f32_bf16 v{vS+t}, v{vK+4*t+i}, v{4+i}, v{vS+t}")
        calc_off(sO)
        issue(vK, 20, sO)
        for r in (8, 4, 2, 1):
            for t in range(T):
                a(f"v_add_f32_dpp v{vS+t}, v{vS+t}, v{vS+t} row_ror:{r} row_mask:0xf bank_mask:0xf")
            if T < 3:
                a("s_nop 1")
        lab = a.newlab("nomask")
        a(f"""
        s_lshl_b32 s82, s64, {lt}
        s_sub_i32 s82, s61, s82
        """)
        for t in range(T - 1, -1, -1):
            a(f"""
            s_cmp_gt_i32 s82, {t}
            s_cbranch_scc1 {lab}
            v_mov_b32 v{vS+t}, 0xff800000
            """)
        a.label(lab)
        if T == 2:
            a(f"v_max3_f32 v18, v{vS}, v{vS+1}, v16")
        else:
            a(f"v_max3_f32 v18, v{vS}, v{vS+1}, v16")
            for t in range(2, T, 2):
                a(f"v_max3_f32 v18, v{vS+t}, v{vS+t+1}, v18")
        a(f"""
        v_mul_f32 v3, s60, v18
        v_fma_f32 v19, v16, s60, -v3
        """)
        for t in range(T):
            a(f"v_fma_f32 v{vS+t}, v{vS+t}, s60, -v3")
        a("v_exp_f32 v19, v19")
        for t in range(T):
            a(f"v_exp_f32 v{vS+t}, v{vS+t}")
        a("v_mov_b32 v16, v18")
        for i in range(8):
            a(f"v_mul_f32 v{8+i}, v19, v{8+i}")
        a(f"v_mul_f32 v17, v19, v17")
        for t in range(T):
            a(f"v_add_f32 v17, v17, v{vS+t}")
        a(f"s_waitcnt vmcnt({3*T})")
        for t in range(T):
            for i in range(4):
                a(f"v_lshlrev_b32 v{vT+2*i}, 16, v{vV+4*t+i}")
                a(f"v_and_b32 v{vT+2*i+1}, 0xffff0000, v{vV+4*t+i}")
            if usepk:
                p = vS + t
                for i in range(4):
                    if p % 2 == 0:
                        a(f"v_pk_fma_f32 v[{8+2*i}:{9+2*i}], v[{vT+2*i}:{vT+2*i+1}], v[{p}:{p+1}], v[{8+2*i}:{9+2*i}] op_sel_hi:[1,0,1]")
                    else:
                        a(f"v_pk_fma_f32 v[{8+2*i}:{9+2*i}], v[{vT+2*i}:{vT+2*i+1}], v[{p-1}:{p}], v[{8+2*i}:{9+2*i}] op_sel:[0,1,0] op_sel_hi:[1,1,1]")
            else:
                for i in range(8):
                    a(f"v_fmac_f32 v{8+i}, v{vS+t}, v{vT+i}")
        issue(vV, 24, sO)
        a(f"""
        s_add_u32 s63, s63, {P}
        s_add_u32 s64, s64, {P}
        """)

    a.label("L_loop")
    half(vKA, vVA, sA)
    half(vKB, vVB, sB)
    a(f"""
    s_sub_u32 s62, s62, 1
    s_cmp_lg_u32 s62, 0
    s_cbranch_scc1 L_loop
    """)
    a.label("L_loop_done")
    if stamp:
        a("""
        s_memrealtime s[94:95]
        s_waitcnt lgkmcnt(0)
        v_mov_b32 v20, s88
        v_mov_b32 v21, s90
        v_mov_b32 v22, s92
        v_mov_b32 v23, s94
        s_lshl_b32 s82, s2, 4
        s_add_u32 s82, s82, s56
        s_lshl_b32 s82, s82, 4
        s_add_u32 s82, s82, 0xc00000
        v_mov_b32 v3, 0
        buffer_store_dwordx4 v[20:23], v3, s[36:39], s82 offen
        s_nop 1
        """)
    NOUT = HGW * 512
    EPT = max(1, NOUT // NTH)
    NACT = NOUT // EPT
    a(f"""
    s_waitcnt vmcnt(0)
    v_lshlrev_b32 v3, 1, v1
    s_lshl_b32 s82, s56, 11
    v_add_u32 v3, s82, v3
    ds_write_b128 v3, v[8:11]
    ds_write_b128 v3, v[12:15] offset:16
    v_lshrrev_b32 v3, 8, v1
    v_lshlrev_b32 v3, 3, v3
    s_lshl_b32 s82, s56, 5
    s_add_u32 s82, s82, {lds_ml}
    v_add_u32 v3, s82, v3
    ds_write_b64 v3, v[16:17]
    s_waitcnt lgkmcnt(0)
    s_barrier
    """)
    if NACT < NTH:
        a(f"""
        s_cmp_ge_u32 s56, {NACT//64}
        s_cbranch_scc1 {'L_pub_done' if fused else 'L_main_end'}
        """)
    vM = 20
    vO = 20 + 2 * P
    vO += vO % 2
    if EPT >= 4:
        vO = (vO + 3) // 4 * 4
    assert vO + P * EPT <= nvgpr
    a(f"""
    v_lshlrev_b32 v3, {log2i(EPT)+2}, v0
    v_lshrrev_b32 v4, 9, v3
    v_lshlrev_b32 v5, 3, v4
    v_add_u32 v5, {lds_ml}, v5
    """)
    for p in range(P):
        a(f"ds_read_b64 v[{vM+2*p}:{vM+2*p+1}], v5 offset:{p*HGW*32}")
    for p in range(P):
        r = vO + p * EPT
        if EPT == 8:
            a(f"ds_read_b128 v[{r}:{r+3}], v3 offset:{p*HGW*2048}")
            a(f"ds_read_b128 v[{r+4}:{r+7}], v3 offset:{p*HGW*2048+16}")
        elif EPT == 4:
            a(f"ds_read_b128 v[{r}:{r+3}], v3 offset:{p*HGW*2048}")
        elif EPT == 2:
            a(f"ds_read_b64 v[{r}:{r+1}], v3 offset:{p*HGW*2048}")
        else:
            a(f"ds_read_b32 v{r}, v3 offset:{p*HGW*2048}")
    a(f"s_waitcnt lgkmcnt({min(P*(2 if EPT==8 else 1),15)})")
    a(f"v_mov_b32 v16, v{vM}")
    for p in range(1, P):
        a(f"v_max_f32 v16, v16, v{vM+2*p}")
    a("v_mul_f32 v6, s60, v16")
    for p in range(P):
        a(f"v_fma_f32 v{vM+2*p}, v{vM+2*p}, s60, -v6")
    for p in range(P):
        a(f"v_exp_f32 v{vM+2*p}, v{vM+2*p}")
    a("s_nop 0")
    a(f"v_mul_f32 v17, v{vM}, v{vM+1}")
    for p in range(1, P):
        a(f"v_fmac_f32 v17, v{vM+2*p}, v{vM+2*p+1}")
    a("s_waitcnt lgkmcnt(0)")
    for e in range(EPT):
        a(f"v_mul_f32 v{8+e}, v{vM}, v{vO+e}")
    for p in range(1, P):
        for e in range(EPT):
            a(f"v_fmac_f32 v{8+e}, v{vM+2*p}, v{vO+p*EPT+e}")
    a(f"""
    s_lshl_b32 s82, s47, 14
    s_lshl_b32 s83, s48, {log2i(HGW)+11}
    s_add_u32 s82, s82, s83
    """)
    if EPT == 8:
        a(f"buffer_store_dwordx4 v[8:11], v3, s[36:39], s82 offen {stf}")
        a(f"buffer_store_dwordx4 v[12:15], v3, s[36:39], s82 offen offset:16 {stf}")
    elif EPT == 4:
        a(f"buffer_store_dwordx4 v[8:11], v3, s[36:39], s82 offen {stf}")
    elif EPT == 2:
        a(f"buffer_store_dwordx2 v[8:9], v3, s[36:39], s82 offen {stf}")
    else:
        a(f"buffer_store_dword v8, v3, s[36:39], s82 offen {stf}")
    a(f"""
    v_and_b32 v5, 511, v3
    v_cmp_eq_u32 vcc, 0, v5
    s_lshl_b32 s83, s48, {log2i(HGW)+2}
    v_add_u32 v4, s83, v4
    v_mul_u32_u24 v4, {NS*8}, v4
    s_lshl_b32 s82, s47, 3
    s_add_u32 s82, s82, 0x{ML_OFF:x}
    s_and_saveexec_b64 s[84:85], vcc
    s_cbranch_execz {'L_pub_rest' if fused else 'L_main_end'}
    buffer_store_dwordx2 v[16:17], v4, s[36:39], s82 offen {stf}
    """)
    if fused:
        emit_fused_tail(a, NS, NW, HGW, lds_bytes)
    a.label("L_main_end")
    a("s_endpgm")

    main_text = a.text()
    NG = 16
    NI = (NS - 1 + NG - 1) // NG
    a.lines.append(".p2align 8")
    a.label("pa_merge_kernel")
    a(f"""
    s_cmp_ge_u32 s2, 64
    s_cbranch_scc1 L_mrg_end
    s_load_dwordx4 s[12:15], s[0:1], 32
    s_load_dwordx4 s[16:19], s[0:1], 48
    v_lshrrev_b32 v2, 5, v0
    v_and_b32 v1, 31, v0
    s_waitcnt lgkmcnt(0)
    s_load_dwordx2 s[40:41], s[12:13], 0
    s_mov_b32 s36, s18
    s_and_b32 s37, s19, 0xffff
    s_mov_b32 s38, 0x{WS_BYTES:x}
    s_mov_b32 s39, 0x00020000
    s_mov_b32 s28, s14
    s_and_b32 s29, s15, 0xffff
    s_mov_b32 s30, 16384
    s_mov_b32 s31, 0x00020000
    s_mov_b32 s60, 0x{f32bits(SCALE_LOG2E):08x}
    s_lshr_b32 s49, s2, 5
    s_and_b32 s58, s2, 31
    s_waitcnt lgkmcnt(0)
    """)
    emit_partition(a, NS, T)
    a(f"""
    s_sub_u32 s84, {NS}, s46
    s_cmp_eq_u32 s49, 0
    s_cselect_b32 s47, 0, s46
    s_cselect_b32 s51, s46, s84
    """)
    vML = 8
    vOO = vML + 2 * NI
    vOO = (vOO + 3) // 4 * 4
    a(f"""
    v_lshlrev_b32 v3, 14, v2
    v_lshl_add_u32 v3, v1, 4, v3
    v_lshlrev_b32 v4, 3, v2
    s_lshl_b32 s82, s47, 14
    s_lshl_b32 s83, s58, 9
    s_add_u32 s82, s82, s83
    s_mul_i32 s83, s58, {NS*8}
    s_lshl_b32 s84, s47, 3
    s_add_u32 s83, s83, s84
    s_add_u32 s83, s83, 0x{ML_OFF:x}
    v_mov_b32 v6, 0x{WS_BYTES:x}
    """)
    for i in range(NI):
        a(f"""
        v_add_u32 v5, {NG*i}, v2
        v_cmp_gt_u32 vcc, s51, v5
        v_add_u32 v5, {NG*i*16384}, v3
        v_add_u32 v7, {NG*i*8}, v4
        v_cndmask_b32 v5, v6, v5, vcc
        v_cndmask_b32 v7, v6, v7, vcc
        buffer_load_dwordx2 v[{vML+2*i}:{vML+2*i+1}], v7, s[36:39], s83 offen
        buffer_load_dwordx4 v[{vOO+4*i}:{vOO+4*i+3}], v5, s[36:39], s82 offen
        """)
    a("s_waitcnt vmcnt(0)")
    for i in range(NI):
        a(f"""
        v_add_u32 v5, {NG*i}, v2
        v_cmp_gt_u32 vcc, s51, v5
        v_mov_b32 v7, 0xf149f2ca
        s_nop 0
        v_cndmask_b32 v{vML+2*i}, v7, v{vML+2*i}, vcc
        """)
    R = vOO + 4 * NI
    R = (R + 3) // 4 * 4
    a(f"v_mov_b32 v{R+4}, v{vML}")
    for i in range(1, NI):
        a(f"v_max_f32 v{R+4}, v{R+4}, v{vML+2*i}")
    a(f"v_mul_f32 v6, s60, v{R+4}")
    for i in range(NI):
        a(f"v_fma_f32 v{vML+2*i}, v{vML+2*i}, s60, -v6")
    for i in range(NI):
        a(f"v_exp_f32 v{vML+2*i}, v{vML+2*i}")
    a("s_nop 0")
    a(f"v_mul_f32 v{R+5}, v{vML}, v{vML+1}")
    for e in range(4):
        a(f"v_mul_f32 v{R+e}, v{vML}, v{vOO+e}")
    for i in range(1, NI):
        a(f"v_fmac_f32 v{R+5}, v{vML+2*i}, v{vML+2*i+1}")
        for e in range(4):
            a(f"v_fmac_f32 v{R+e}, v{vML+2*i}, v{vOO+4*i+e}")
    a(f"""
    v_lshlrev_b32 v3, 4, v0
    ds_write_b128 v3, v[{R}:{R+3}]
    v_lshlrev_b32 v4, 3, v2
    ds_write_b64 v4, v[{R+4}:{R+5}] offset:8192
    s_waitcnt lgkmcnt(0)
    s_barrier
    v_cmp_gt_u32 vcc, 32, v0
    s_and_saveexec_b64 s[84:85], vcc
    s_cbranch_execz L_mrg_end
    v_mov_b32 v4, 0
    """)
    vM2 = 8
    vO2 = vM2 + 2 * NG
    for g in range(NG):
        a(f"ds_read_b64 v[{vM2+2*g}:{vM2+2*g+1}], v4 offset:{8192+8*g}")
    for g in range(NG):
        a(f"ds_read_b128 v[{vO2+4*g}:{vO2+4*g+3}], v3 offset:{512*g}")
    a("s_waitcnt lgkmcnt(0)")
    a(f"v_mov_b32 v5, v{vM2}")
    for g in range(1, NG):
        a(f"v_max_f32 v5, v5, v{vM2+2*g}")
    a(f"v_mul_f32 v6, s60, v5")
    for g in range(NG):
        a(f"v_fma_f32 v{vM2+2*g}, v{vM2+2*g}, s60, -v6")
    for g in range(NG):
        a(f"v_exp_f32 v{vM2+2*g}, v{vM2+2*g}")
    a("s_nop 0")
    a(f"v_mul_f32 v7, v{vM2}, v{vM2+1}")
    for e in range(4):
        a(f"v_mul_f32 v{vO2+e}, v{vM2}, v{vO2+e}")
    for g in range(1, NG):
        a(f"v_fmac_f32 v7, v{vM2+2*g}, v{vM2+2*g+1}")
        for e in range(4):
            a(f"v_fmac_f32 v{vO2+e}, v{vM2+2*g}, v{vO2+4*g+e}")
    a(f"""
    v_rcp_f32 v7, v7
    s_nop 0
    v_mul_f32 v{vO2}, v{vO2}, v7
    v_mul_f32 v{vO2+1}, v{vO2+1}, v7
    v_mul_f32 v{vO2+2}, v{vO2+2}, v7
    v_mul_f32 v{vO2+3}, v{vO2+3}, v7
    v_cvt_pk_bf16_f32 v4, v{vO2}, v{vO2+1}
    v_cvt_pk_bf16_f32 v5, v{vO2+2}, v{vO2+3}
    v_lshlrev_b32 v3, 3, v0
    s_lshl_b32 s82, s2, 8
    buffer_store_dwordx2 v[4:5], v3, s[28:31], s82 offen
    """)
    a.label("L_mrg_end")
    a("s_endpgm")
    nv2 = max(R + 6, vO2 + 4 * NG)

    def kd(name, nv):
        nv = (nv + 3) // 4 * 4
        return f""".amdhsa_kernel {name}
  .amdhsa_next_free_vgpr {nv}
  .amdhsa_next_free_sgpr 96
  .amdhsa_accum_offset {nv}
  .amdhsa_group_segment_fixed_size 0
  .amdhsa_kernarg_size 64
  .amdhsa_user_sgpr_count 2
  .amdhsa_user_sgpr_kernarg_segment_ptr 1
  .amdhsa_system_sgpr_workgroup_id_x 1
.end_amdhsa_kernel
"""

    out = HEADER
    out += f"; config: NWG={NWG} NW={NW} HGW={HGW} T={T} ldf='{ldf}' usepk={usepk} fused={fused}\n"
    if fused:
        out += f"; @launch grid=({NWG},1,1) block=({NTH},1,1) lds={lds_bytes+16}\n"
        out += f""".amdgcn_target "amdgcn-amd-amdhsa--gfx950"
.text
.globl {MAIN}
.type {MAIN},@function
.p2align 8
"""
        out += main_text
        out += """.section .rodata,"a"
.p2align 6
"""
        out += kd(MAIN, nvgpr)
        return out
    out += f"; @launch kernel=pa_main_kernel grid=({NWG},1,1) block=({NTH},1,1) lds={lds_bytes}\n"
    out += f"; @launch kernel=pa_merge_kernel grid=(64,1,1) block=(512,1,1) lds={8192+128}\n"
    out += """.amdgcn_target "amdgcn-amd-amdhsa--gfx950"
.text
.globl pa_main_kernel
.globl pa_merge_kernel
.type pa_main_kernel,@function
.type pa_merge_kernel,@function
.p2align 8
"""
    out += a.text()
    out += """.section .rodata,"a"
.p2align 6
"""
    out += kd("pa_main_kernel", nvgpr)
    out += ".p2align 6\n"
    out += kd("pa_merge_kernel", nv2)
    return out


if __name__ == "__main__":
    import argparse
    ap = argparse.ArgumentParser()
    ap.add_argument("-o", default="standalone__paged_block_table_kv_pagedattention__decode.s")
    ap.add_argument("--NWG", type=int, default=256)
    ap.add_argument("--NW", type=int, default=16)
    ap.add_argument("--HGW", type=int, default=8)
    ap.add_argument("--T", type=int, default=4)
    ap.add_argument("--ldf", default="")
    ap.add_argument("--usepk", action="store_true")
    ap.add_argument("--stamp", action="store_true")
    ap.add_argument("--fused", action="store_true")
    args = ap.parse_args()
    s = gen(args.NWG, args.NW, args.HGW, args.T, args.ldf, args.usepk, args.stamp, args.fused)
    open(args.o, "w").write(s)
```

```python
import sys, struct, math

HEADER = """; Kernarg layout for this problem (64 bytes, ptrs only, base s[0:1]):
;
"""

KV_BYTES = 1028 * 131072
ML_OFF = 8 << 20
WS_BYTES = 16 << 20
SCALE_LOG2E = (128 ** -0.5) * math.log2(math.e)


def f32bits(x):
    return struct.unpack('<I', struct.pack('<f', x))[0]


class Asm:
    def __init__(self):
        self.lines = []
        self.nlab = 0

    def __call__(self, s):
        for l in s.strip('\n').split('\n'):
            self.lines.append('    ' + l.strip())

    def label(self, name):
        self.lines.append(name + ':')

    def newlab(self, base):
        self.nlab += 1
        return f"L_{base}_{self.nlab}"

    def text(self):
        return '\n'.join(self.lines) + '\n'


def log2i(x):
    r = int(math.log2(x))
    assert 1 << r == x
    return r


def emit_partition(a, NS, T):
    lt = log2i(T)
    a(f"""
    s_cmp_lt_i32 s40, 1
    s_cselect_b32 s42, 8192, s40
    s_min_u32 s42, s42, 8192
    s_cmp_lt_i32 s41, 1
    s_cselect_b32 s43, 8192, s41
    s_min_u32 s43, s43, 8192
    s_add_u32 s44, s42, {T-1}
    s_lshr_b32 s44, s44, {lt}
    s_add_u32 s45, s43, {T-1}
    s_lshr_b32 s45, s45, {lt}
    s_add_u32 s82, s44, s45
    v_cvt_f32_u32 v3, s44
    v_cvt_f32_u32 v4, s82
    v_rcp_f32 v4, v4
    s_nop 0
    v_mul_f32 v3, v3, v4
    v_mul_f32 v3, 0x{f32bits(float(NS)):08x}, v3
    v_add_f32 v3, 0.5, v3
    v_cvt_u32_f32 v3, v3
    s_nop 0
    v_readfirstlane_b32 s46, v3
    s_nop 3
    s_max_u32 s46, s46, 1
    s_min_u32 s46, s46, {NS-1}
    """)


def emit_fused_tail(a, NS, NW, HGW, lds_bytes):
    NTH = NW * 64
    NHD = HGW * 4
    NG = NTH // (NHD * 32)
    NI = (NS - 1 + NG - 1) // NG
    lds_flag = lds_bytes
    a.label("L_pub_rest")
    a("s_mov_b64 exec, s[84:85]")
    a.label("L_pub_done")
    a(f"""
    s_waitcnt vmcnt(0)
    s_barrier
    s_mov_b32 s32, s16
    s_and_b32 s33, s17, 0xffff
    s_mov_b32 s34, 256
    s_mov_b32 s28, s14
    s_and_b32 s29, s15, 0xffff
    s_mov_b32 s30, 16384
    s_cmp_lg_u32 s56, 0
    s_cbranch_scc1 L_wait_flag
    s_lshl_b32 s82, s49, {log2i(8//HGW)}
    s_add_u32 s82, s82, s48
    s_lshl_b32 s82, s82, 2
    v_mov_b32 v3, 0
    v_mov_b32 v4, 1
    v_cmp_eq_u32 vcc, 0, v0
    s_and_saveexec_b64 s[84:85], vcc
    buffer_atomic_add v4, v3, s[32:35], s82 offen sc0
    s_waitcnt vmcnt(0)
    v_mov_b32 v3, {lds_flag}
    ds_write_b32 v3, v4
    s_waitcnt lgkmcnt(0)
    s_mov_b64 exec, s[84:85]
    """)
    a.label("L_wait_flag")
    a(f"""
    s_barrier
    v_mov_b32 v3, {lds_flag}
    ds_read_b32 v4, v3
    s_waitcnt lgkmcnt(0)
    v_readfirstlane_b32 s82, v4
    s_nop 3
    s_add_u32 s82, s82, 1
    s_cmp_lg_u32 s82, s51
    s_cbranch_scc1 L_main_end
    """)
    lh = log2i(NHD)
    vML = 8
    vOO = (vML + 2 * NI + 3) // 4 * 4
    a(f"""
    s_sub_u32 s47, s47, s50
    v_and_b32 v1, 31, v0
    v_bfe_u32 v2, v0, 5, {lh}
    v_lshrrev_b32 v3, {5+lh}, v0
    s_lshl_b32 s83, s48, {lh}
    v_add_u32 v2, s83, v2
    v_lshlrev_b32 v4, 14, v3
    v_lshl_add_u32 v4, v1, 4, v4
    v_lshl_add_u32 v4, v2, 9, v4
    v_mul_u32_u24 v5, {NS*8}, v2
    v_lshl_add_u32 v5, v3, 3, v5
    s_lshl_b32 s82, s47, 14
    s_lshl_b32 s83, s47, 3
    s_add_u32 s83, s83, 0x{ML_OFF:x}
    v_mov_b32 v6, 0x{WS_BYTES:x}
    """)
    tA, tB = vOO + 4 * NI, vOO + 4 * NI + 1
    for i in range(NI):
        a(f"""
        v_add_u32 v{tA}, {NG*i}, v3
        v_cmp_gt_u32 vcc, s51, v{tA}
        v_add_u32 v{tA}, {NG*i*16384}, v4
        v_add_u32 v{tB}, {NG*i*8}, v5
        v_cndmask_b32 v{tA}, v6, v{tA}, vcc
        v_cndmask_b32 v{tB}, v6, v{tB}, vcc
        buffer_load_dwordx2 v[{vML+2*i}:{vML+2*i+1}], v{tB}, s[36:39], s83 offen sc1
        buffer_load_dwordx4 v[{vOO+4*i}:{vOO+4*i+3}], v{tA}, s[36:39], s82 offen sc1
        """)
    a("s_waitcnt vmcnt(0)")
    for i in range(NI):
        a(f"""
        v_add_u32 v{tA}, {NG*i}, v3
        v_cmp_gt_u32 vcc, s51, v{tA}
        v_mov_b32 v7, 0xf1800000
        s_nop 0
        v_cndmask_b32 v{vML+2*i}, v7, v{vML+2*i}, vcc
        """)
    R = (vOO + 4 * NI + 2 + 3) // 4 * 4
    a(f"v_mov_b32 v{R+4}, v{vML}")
    for i in range(1, NI):
        a(f"v_max_f32 v{R+4}, v{R+4}, v{vML+2*i}")
    a(f"v_mul_f32 v6, s60, v{R+4}")
    for i in range(NI):
        a(f"v_fma_f32 v{vML+2*i}, v{vML+2*i}, s60, -v6")
    for i in range(NI):
        a(f"v_exp_f32 v{vML+2*i}, v{vML+2*i}")
    a("s_nop 0")
    a(f"v_mul_f32 v{R+5}, v{vML}, v{vML+1}")
    for e in range(4):
        a(f"v_mul_f32 v{R+e}, v{vML}, v{vOO+e}")
    for i in range(1, NI):
        a(f"v_fmac_f32 v{R+5}, v{vML+2*i}, v{vML+2*i+1}")
        for e in range(4):
            a(f"v_fmac_f32 v{R+e}, v{vML+2*i}, v{vOO+4*i+e}")
    a(f"""
    v_lshlrev_b32 v4, 4, v0
    ds_write_b128 v4, v[{R}:{R+3}]
    v_lshrrev_b32 v5, 5, v0
    v_lshlrev_b32 v5, 3, v5
    ds_write_b64 v5, v[{R+4}:{R+5}] offset:16384
    s_waitcnt lgkmcnt(0)
    s_barrier
    s_cmp_ge_u32 s56, {NHD*32//64}
    s_cbranch_scc1 L_main_end
    """)
    vM2 = 8
    vO2 = (vM2 + 2 * NG + 3) // 4 * 4
    for g in range(NG):
        a(f"ds_read_b64 v[{vM2+2*g}:{vM2+2*g+1}], v5 offset:{16384+NHD*8*g}")
    for g in range(NG):
        a(f"ds_read_b128 v[{vO2+4*g}:{vO2+4*g+3}], v4 offset:{NHD*512*g}")
    a("s_waitcnt lgkmcnt(0)")
    a(f"v_mov_b32 v3, v{vM2}")
    for g in range(1, NG):
        a(f"v_max_f32 v3, v3, v{vM2+2*g}")
    a(f"v_mul_f32 v6, s60, v3")
    for g in range(NG):
        a(f"v_fma_f32 v{vM2+2*g}, v{vM2+2*g}, s60, -v6")
    for g in range(NG):
        a(f"v_exp_f32 v{vM2+2*g}, v{vM2+2*g}")
    a("s_nop 0")
    a(f"v_mul_f32 v7, v{vM2}, v{vM2+1}")
    for e in range(4):
        a(f"v_mul_f32 v{vO2+e}, v{vM2}, v{vO2+e}")
    for g in range(1, NG):
        a(f"v_fmac_f32 v7, v{vM2+2*g}, v{vM2+2*g+1}")
        for e in range(4):
            a(f"v_fmac_f32 v{vO2+e}, v{vM2+2*g}, v{vO2+4*g+e}")
    a(f"""
    v_rcp_f32 v7, v7
    s_nop 0
    v_mul_f32 v{vO2}, v{vO2}, v7
    v_mul_f32 v{vO2+1}, v{vO2+1}, v7
    v_mul_f32 v{vO2+2}, v{vO2+2}, v7
    v_mul_f32 v{vO2+3}, v{vO2+3}, v7
    v_cvt_pk_bf16_f32 v4, v{vO2}, v{vO2+1}
    v_cvt_pk_bf16_f32 v5, v{vO2+2}, v{vO2+3}
    v_lshlrev_b32 v3, 3, v0
    s_lshl_b32 s82, s49, 13
    s_lshl_b32 s83, s48, {lh+8}
    s_add_u32 s82, s82, s83
    buffer_store_dwordx2 v[4:5], v3, s[28:31], s82 offen
    """)
    return R + 6


def gen(NWG=256, NW=16, HGW=8, T=4, ldf="", usepk=False, stamp=False, fused=False, bar=0, wts=None):
    NS = NWG * HGW // 8
    WPS = 8 // HGW
    P = NW // HGW
    lt = log2i(T)
    TPB = 16 // T
    NTH = NW * 64
    a = Asm()
    MAIN = "standalone__paged_block_table_kv_pagedattention__decode_kernel" if fused else "pa_main_kernel"
    stf = "sc1" if fused else ""

    vKA = 36
    vKB = vKA + 4 * T
    vVA = vKB + 4 * T
    vVB = vVA + 4 * T
    nvgpr = vVB + 4 * T
    sA, sB = 66, 74
    vS = 20
    vT = 28

    lds_ml = NW * 2048
    lds_bytes = lds_ml + NW * 4 * 8

    if wts is None:
        STEP = P
        wave_range = f"""
    s_add_u32 s64, s54, s57
    s_mov_b32 s63, s64
    s_sub_u32 s62, s55, s54
    {'' if bar else 's_sub_u32 s62, s62, s57'}
    s_add_i32 s62, s62, {2*P-1}
    s_max_i32 s62, s62, 0
    s_lshr_b32 s62, s62, {log2i(2*P)}
"""
    else:
        STEP = 1
        assert len(wts) == P and P <= 8
        tot = float(sum(wts)); cum = [0.0]
        for w_ in wts: cum.append(cum[-1] + w_ / tot)
        bnd = [min(255, int(round(c * 256))) for c in cum[:-1]]
        K = 0
        for i, b_ in enumerate(bnd): K |= b_ << (8 * i)
        K2 = K >> 8
        wave_range = f"""
    s_mov_b32 s84, 0x{K & 0xffffffff:x}
    s_mov_b32 s85, 0x{K >> 32:x}
    s_lshl_b32 s82, s57, 3
    s_lshr_b64 s[84:85], s[84:85], s82
    s_and_b32 s83, s84, 0xff
    s_lshr_b32 s84, s84, 8
    s_and_b32 s84, s84, 0xff
    s_sub_u32 s62, s55, s54
    s_mul_i32 s83, s83, s62
    s_lshr_b32 s83, s83, 8
    s_mul_i32 s84, s84, s62
    s_lshr_b32 s84, s84, 8
    s_add_u32 s64, s54, s83
    s_add_u32 s84, s54, s84
    s_cmp_eq_u32 s57, {P-1}
    s_cselect_b32 s55, s55, s84
    s_lshl_b32 s61, s55, {lt}
    s_min_u32 s61, s61, s53
    s_mov_b32 s63, s64
    s_sub_u32 s62, s55, s64
    s_add_u32 s62, s62, 1
    s_lshr_b32 s62, s62, 1
"""
    a.label(MAIN)
    a(f"""
    s_cmp_ge_u32 s2, {NWG}
    s_cbranch_scc1 L_main_end
    {'s_memrealtime s[88:89]' if stamp else ''}
    s_load_dwordx4 s[4:7], s[0:1], 0
    s_load_dwordx4 s[8:11], s[0:1], 16
    s_load_dwordx4 s[12:15], s[0:1], 32
    s_load_dwordx4 s[16:19], s[0:1], 48
    v_lshrrev_b32 v3, 6, v0
    v_and_b32 v1, 63, v0
    v_readfirstlane_b32 s56, v3
    v_lshlrev_b32 v2, 2, v1
    v_lshlrev_b32 v1, 4, v1
    s_waitcnt lgkmcnt(0)
    s_load_dwordx2 s[40:41], s[12:13], 0
    s_mov_b32 s20, s6
    s_and_b32 s21, s7, 0xffff
    s_mov_b32 s22, 0x{KV_BYTES:x}
    s_mov_b32 s23, 0x00020000
    s_mov_b32 s24, s8
    s_and_b32 s25, s9, 0xffff
    s_mov_b32 s26, 0x{KV_BYTES:x}
    s_mov_b32 s27, 0x00020000
    s_mov_b32 s28, s4
    s_and_b32 s29, s5, 0xffff
    s_mov_b32 s30, 16384
    s_mov_b32 s31, 0x00020000
    s_mov_b32 s32, s10
    s_and_b32 s33, s11, 0xffff
    s_mov_b32 s34, 4096
    s_mov_b32 s35, 0x00020000
    s_mov_b32 s36, s18
    s_and_b32 s37, s19, 0xffff
    s_mov_b32 s38, 0x{WS_BYTES:x}
    s_mov_b32 s39, 0x00020000
    s_mov_b32 s60, 0x{f32bits(SCALE_LOG2E):08x}
    s_lshr_b32 s47, s2, {log2i(WPS)}
    s_and_b32 s48, s2, {WPS-1}
    s_and_b32 s58, s56, {HGW-1}
    s_lshr_b32 s57, s56, {log2i(HGW)}
    s_lshl_b32 s82, s48, {log2i(HGW)}
    s_add_u32 s58, s58, s82
    s_waitcnt lgkmcnt(0)
    """)
    emit_partition(a, NS, T)
    a(f"""
    s_cmp_ge_u32 s47, s46
    s_cselect_b32 s49, 1, 0
    s_cselect_b32 s82, s46, 0
    s_cselect_b32 s52, s45, s44
    s_cselect_b32 s53, s43, s42
    s_cselect_b32 s83, s41, s40
    s_sub_u32 s50, s47, s82
    s_sub_u32 s84, {NS}, s46
    s_cmp_ge_u32 s47, s46
    s_cselect_b32 s51, s84, s46
    s_cmp_lt_i32 s83, 1
    s_cselect_b32 s30, 0, 16384
    v_cvt_f32_u32 v3, s52
    v_cvt_f32_u32 v4, s51
    v_rcp_f32 v4, v4
    s_add_u32 s84, s50, 1
    v_cvt_f32_u32 v5, s50
    v_cvt_f32_u32 v6, s84
    v_mul_f32 v3, v3, v4
    v_mul_f32 v5, v5, v3
    v_mul_f32 v6, v6, v3
    v_cvt_u32_f32 v5, v5
    v_cvt_u32_f32 v6, v6
    s_nop 0
    v_readfirstlane_b32 s54, v5
    v_readfirstlane_b32 s55, v6
    s_nop 3
    s_min_u32 s54, s54, s52
    s_min_u32 s55, s55, s52
    s_cmp_eq_u32 s84, s51
    s_cselect_b32 s55, s52, s55
    s_lshr_b32 s59, s54, {log2i(TPB)}
    s_lshl_b32 s82, s49, 9
    s_add_u32 s82, s82, s59
    s_lshl_b32 s82, s82, 2
    buffer_load_dword v2, v2, s[32:35], s82 offen
    s_lshl_b32 s82, s49, 13
    s_lshl_b32 s83, s58, 10
    s_add_u32 s82, s82, s83
    buffer_load_dwordx4 v[4:7], v1, s[28:31], s82 offen
    s_lshl_b32 s61, s55, {lt}
    s_min_u32 s61, s61, s53
    {wave_range}
    s_lshl_b32 s65, s58, 10
    v_mov_b32 v8, 0
    v_mov_b32 v9, 0
    v_mov_b32 v10, 0
    v_mov_b32 v11, 0
    v_mov_b32 v12, 0
    v_mov_b32 v13, 0
    v_mov_b32 v14, 0
    v_mov_b32 v15, 0
    v_mov_b32 v16, 0xf1800000
    v_mov_b32 v17, 0
    s_waitcnt vmcnt(1)
    """)

    def calc_off(sO):
        a(f"""
        s_lshr_b32 s82, s63, {log2i(TPB)}
        s_sub_u32 s82, s82, s59
        s_and_b32 s82, s82, 63
        v_readlane_b32 s83, v2, s82
        s_and_b32 s84, s63, {TPB-1}
        s_lshl_b32 s84, s84, {13+lt}
        s_add_u32 s84, s84, s65
        s_lshl_b32 s83, s83, 17
        s_add_u32 s83, s83, s84
        s_cmp_lt_u32 s63, s55
        s_cselect_b32 s{sO}, s83, 0x{KV_BYTES:x}
        s_cselect_b32 s84, 8192, 0
        """)
        for t in range(1, T):
            a(f"s_add_u32 s{sO+t}, s{sO+t-1}, s84")

    def issue(vB, srd, sO):
        for t in range(T):
            a(f"buffer_load_dwordx4 v[{vB+4*t}:{vB+4*t+3}], v1, s[{srd}:{srd+3}], s{sO+t} offen {ldf}")

    calc_off(sA)
    issue(vKA, 20, sA)
    issue(vVA, 24, sA)
    a(f"s_add_u32 s63, s63, {STEP}")
    calc_off(sB)
    issue(vKB, 20, sB)
    issue(vVB, 24, sB)
    a(f"""
    s_add_u32 s63, s63, {STEP}
    {'s_memrealtime s[90:91]' if stamp else ''}
    {'s_waitcnt vmcnt(' + str(3*T) + ')' if stamp else ''}
    {'s_memrealtime s[92:93]' if stamp else ''}
    s_cmp_eq_u32 s62, 0
    s_cbranch_scc1 L_loop_done
    """)

    def half(vK, vV, sO):
        a(f"s_waitcnt vmcnt({3*T})")
        for i in range(4):
            for t in range(T):
                if i == 0:
                    a(f"v_dot2_f32_bf16 v{vS+t}, v{vK+4*t+i}, v{4+i}, 0")
                else:
                    a(f"v_dot2_f32_bf16 v{vS+t}, v{vK+4*t+i}, v{4+i}, v{vS+t}")
        calc_off(sO)
        issue(vK, 20, sO)
        for r in (8, 4, 2, 1):
            for t in range(T):
                a(f"v_add_f32_dpp v{vS+t}, v{vS+t}, v{vS+t} row_ror:{r} row_mask:0xf bank_mask:0xf")
            if T < 3:
                a("s_nop 1")
        lab = a.newlab("nomask")
        a(f"""
        s_lshl_b32 s82, s64, {lt}
        s_sub_i32 s82, s61, s82
        """)
        for t in range(T - 1, -1, -1):
            a(f"""
            s_cmp_gt_i32 s82, {t}
            s_cbranch_scc1 {lab}
            v_mov_b32 v{vS+t}, 0xff800000
            """)
        a.label(lab)
        if T == 2:
            a(f"v_max3_f32 v18, v{vS}, v{vS+1}, v16")
        else:
            a(f"v_max3_f32 v18, v{vS}, v{vS+1}, v16")
            for t in range(2, T, 2):
                a(f"v_max3_f32 v18, v{vS+t}, v{vS+t+1}, v18")
        a(f"""
        v_mul_f32 v3, s60, v18
        v_fma_f32 v19, v16, s60, -v3
        """)
        for t in range(T):
            a(f"v_fma_f32 v{vS+t}, v{vS+t}, s60, -v3")
        a("v_exp_f32 v19, v19")
        for t in range(T):
            a(f"v_exp_f32 v{vS+t}, v{vS+t}")
        a("v_mov_b32 v16, v18")
        for i in range(8):
            a(f"v_mul_f32 v{8+i}, v19, v{8+i}")
        a(f"v_mul_f32 v17, v19, v17")
        for t in range(T):
            a(f"v_add_f32 v17, v17, v{vS+t}")
        a(f"s_waitcnt vmcnt({3*T})")
        for t in range(T):
            for i in range(4):
                a(f"v_lshlrev_b32 v{vT+2*i}, 16, v{vV+4*t+i}")
                a(f"v_and_b32 v{vT+2*i+1}, 0xffff0000, v{vV+4*t+i}")
            if usepk:
                p = vS + t
                for i in range(4):
                    if p % 2 == 0:
                        a(f"v_pk_fma_f32 v[{8+2*i}:{9+2*i}], v[{vT+2*i}:{vT+2*i+1}], v[{p}:{p+1}], v[{8+2*i}:{9+2*i}] op_sel_hi:[1,0,1]")
                    else:
                        a(f"v_pk_fma_f32 v[{8+2*i}:{9+2*i}], v[{vT+2*i}:{vT+2*i+1}], v[{p-1}:{p}], v[{8+2*i}:{9+2*i}] op_sel:[0,1,0] op_sel_hi:[1,1,1]")
            else:
                for i in range(8):
                    a(f"v_fmac_f32 v{8+i}, v{vS+t}, v{vT+i}")
        issue(vV, 24, sO)
        a(f"""
        s_add_u32 s63, s63, {STEP}
        s_add_u32 s64, s64, {STEP}
        """)

    a.label("L_loop")
    half(vKA, vVA, sA)
    if bar == 2:
        a("s_barrier")
    half(vKB, vVB, sB)
    if bar:
        a("s_barrier")
    a(f"""
    s_sub_u32 s62, s62, 1
    s_cmp_lg_u32 s62, 0
    s_cbranch_scc1 L_loop
    """)
    a.label("L_loop_done")
    if stamp:
        a("""
        s_memrealtime s[94:95]
        s_waitcnt lgkmcnt(0)
        v_mov_b32 v20, s88
        v_mov_b32 v21, s90
        v_mov_b32 v22, s92
        v_mov_b32 v23, s94
        s_lshl_b32 s82, s2, 4
        s_add_u32 s82, s82, s56
        s_lshl_b32 s82, s82, 4
        s_add_u32 s82, s82, 0xc00000
        v_mov_b32 v3, 0
        buffer_store_dwordx4 v[20:23], v3, s[36:39], s82 offen
        s_nop 1
        """)
    NOUT = HGW * 512
    EPT = max(1, NOUT // NTH)
    NACT = NOUT // EPT
    a(f"""
    s_waitcnt vmcnt(0)
    v_lshlrev_b32 v3, 1, v1
    s_lshl_b32 s82, s56, 11
    v_add_u32 v3, s82, v3
    ds_write_b128 v3, v[8:11]
    ds_write_b128 v3, v[12:15] offset:16
    v_lshrrev_b32 v3, 8, v1
    v_lshlrev_b32 v3, 3, v3
    s_lshl_b32 s82, s56, 5
    s_add_u32 s82, s82, {lds_ml}
    v_add_u32 v3, s82, v3
    ds_write_b64 v3, v[16:17]
    s_waitcnt lgkmcnt(0)
    s_barrier
    """)
    if NACT < NTH:
        a(f"""
        s_cmp_ge_u32 s56, {NACT//64}
        s_cbranch_scc1 {'L_pub_done' if fused else 'L_main_end'}
        """)
    vM = 20
    vO = 20 + 2 * P
    vO += vO % 2
    if EPT >= 4:
        vO = (vO + 3) // 4 * 4
    assert vO + P * EPT <= nvgpr
    a(f"""
    v_lshlrev_b32 v3, {log2i(EPT)+2}, v0
    v_lshrrev_b32 v4, 9, v3
    v_lshlrev_b32 v5, 3, v4
    v_add_u32 v5, {lds_ml}, v5
    """)
    for p in range(P):
        a(f"ds_read_b64 v[{vM+2*p}:{vM+2*p+1}], v5 offset:{p*HGW*32}")
    for p in range(P):
        r = vO + p * EPT
        if EPT == 8:
            a(f"ds_read_b128 v[{r}:{r+3}], v3 offset:{p*HGW*2048}")
            a(f"ds_read_b128 v[{r+4}:{r+7}], v3 offset:{p*HGW*2048+16}")
        elif EPT == 4:
            a(f"ds_read_b128 v[{r}:{r+3}], v3 offset:{p*HGW*2048}")
        elif EPT == 2:
            a(f"ds_read_b64 v[{r}:{r+1}], v3 offset:{p*HGW*2048}")
        else:
            a(f"ds_read_b32 v{r}, v3 offset:{p*HGW*2048}")
    a(f"s_waitcnt lgkmcnt({min(P*(2 if EPT==8 else 1),15)})")
    a(f"v_mov_b32 v16, v{vM}")
    for p in range(1, P):
        a(f"v_max_f32 v16, v16, v{vM+2*p}")
    a("v_mul_f32 v6, s60, v16")
    for p in range(P):
        a(f"v_fma_f32 v{vM+2*p}, v{vM+2*p}, s60, -v6")
    for p in range(P):
        a(f"v_exp_f32 v{vM+2*p}, v{vM+2*p}")
    a("s_nop 0")
    a(f"v_mul_f32 v17, v{vM}, v{vM+1}")
    for p in range(1, P):
        a(f"v_fmac_f32 v17, v{vM+2*p}, v{vM+2*p+1}")
    a("s_waitcnt lgkmcnt(0)")
    for e in range(EPT):
        a(f"v_mul_f32 v{8+e}, v{vM}, v{vO+e}")
    for p in range(1, P):
        for e in range(EPT):
            a(f"v_fmac_f32 v{8+e}, v{vM+2*p}, v{vO+p*EPT+e}")
    a(f"""
    s_lshl_b32 s82, s47, 14
    s_lshl_b32 s83, s48, {log2i(HGW)+11}
    s_add_u32 s82, s82, s83
    """)
    if EPT == 8:
        a(f"buffer_store_dwordx4 v[8:11], v3, s[36:39], s82 offen {stf}")
        a(f"buffer_store_dwordx4 v[12:15], v3, s[36:39], s82 offen offset:16 {stf}")
    elif EPT == 4:
        a(f"buffer_store_dwordx4 v[8:11], v3, s[36:39], s82 offen {stf}")
    elif EPT == 2:
        a(f"buffer_store_dwordx2 v[8:9], v3, s[36:39], s82 offen {stf}")
    else:
        a(f"buffer_store_dword v8, v3, s[36:39], s82 offen {stf}")
    a(f"""
    v_and_b32 v5, 511, v3
    v_cmp_eq_u32 vcc, 0, v5
    s_lshl_b32 s83, s48, {log2i(HGW)+2}
    v_add_u32 v4, s83, v4
    v_mul_u32_u24 v4, {NS*8}, v4
    s_lshl_b32 s82, s47, 3
    s_add_u32 s82, s82, 0x{ML_OFF:x}
    """)
    if not fused:
        a(f"""
        s_mul_i32 s83, s49, {32*NS*8}
        s_sub_u32 s86, {32*NS*8}, s83
        s_add_u32 s86, s86, s82
        s_add_u32 s82, s82, s83
        v_mov_b32 v18, 0xf1800000
        v_mov_b32 v19, 0
        """)
    a(f"""
    s_and_saveexec_b64 s[84:85], vcc
    s_cbranch_execz {'L_pub_rest' if fused else 'L_main_end'}
    buffer_store_dwordx2 v[16:17], v4, s[36:39], s82 offen {stf}
    """)
    if not fused:
        a("buffer_store_dwordx2 v[18:19], v4, s[36:39], s86 offen")
    if fused:
        nvgpr = max(nvgpr, emit_fused_tail(a, NS, NW, HGW, lds_bytes))
    a.label("L_main_end")
    a("s_endpgm")

    main_text = a.text()
    NG = 16
    NI = (NS + NG - 1) // NG
    assert NS % NG == 0
    a.lines.append(".p2align 8")
    a.label("pa_merge_kernel")
    vML = 8
    vOO = vML + 2 * NI
    vOO = (vOO + 3) // 4 * 4
    a(f"""
    s_cmp_ge_u32 s2, 64
    s_cbranch_scc1 L_mrg_end
    s_load_dwordx2 s[14:15], s[0:1], 40
    s_load_dwordx2 s[18:19], s[0:1], 56
    v_lshrrev_b32 v2, 5, v0
    v_and_b32 v1, 31, v0
    v_lshlrev_b32 v3, 14, v2
    v_lshl_add_u32 v3, v1, 4, v3
    v_lshlrev_b32 v4, 3, v2
    s_mov_b32 s38, 0x{WS_BYTES:x}
    s_mov_b32 s39, 0x00020000
    s_mov_b32 s30, 16384
    s_mov_b32 s31, 0x00020000
    s_mov_b32 s60, 0x{f32bits(SCALE_LOG2E):08x}
    s_and_b32 s58, s2, 31
    s_lshl_b32 s82, s58, 9
    s_mul_i32 s83, s2, {NS*8}
    s_add_u32 s83, s83, 0x{ML_OFF:x}
    s_waitcnt lgkmcnt(0)
    s_mov_b32 s36, s18
    s_and_b32 s37, s19, 0xffff
    s_mov_b32 s28, s14
    s_and_b32 s29, s15, 0xffff
    """)
    for i in range(NI):
        a(f"buffer_load_dwordx2 v[{vML+2*i}:{vML+2*i+1}], v4, s[36:39], s83 offen offset:{NG*i*8}")
    for i in range(NI):
        a(f"""
        buffer_load_dwordx4 v[{vOO+4*i}:{vOO+4*i+3}], v3, s[36:39], s82 offen
        s_add_u32 s82, s82, {NG*16384}
        """)
    a(f"s_waitcnt vmcnt({NI})")
    R = vOO + 4 * NI
    R = (R + 3) // 4 * 4
    a(f"v_mov_b32 v{R+4}, v{vML}")
    for i in range(1, NI):
        a(f"v_max_f32 v{R+4}, v{R+4}, v{vML+2*i}")
    a(f"v_mul_f32 v6, s60, v{R+4}")
    for i in range(NI):
        a(f"v_fma_f32 v{vML+2*i}, v{vML+2*i}, s60, -v6")
    for i in range(NI):
        a(f"v_exp_f32 v{vML+2*i}, v{vML+2*i}")
    a("s_nop 0")
    a(f"v_mul_f32 v{R+5}, v{vML}, v{vML+1}")
    a("s_waitcnt vmcnt(0)")
    for e in range(4):
        a(f"v_mul_f32 v{R+e}, v{vML}, v{vOO+e}")
    for i in range(1, NI):
        a(f"v_fmac_f32 v{R+5}, v{vML+2*i}, v{vML+2*i+1}")
        for e in range(4):
            a(f"v_fmac_f32 v{R+e}, v{vML+2*i}, v{vOO+4*i+e}")
    a(f"""
    v_lshlrev_b32 v3, 4, v0
    ds_write_b128 v3, v[{R}:{R+3}]
    v_lshlrev_b32 v4, 3, v2
    ds_write_b64 v4, v[{R+4}:{R+5}] offset:8192
    s_waitcnt lgkmcnt(0)
    s_barrier
    v_cmp_gt_u32 vcc, 32, v0
    s_and_saveexec_b64 s[84:85], vcc
    s_cbranch_execz L_mrg_end
    v_mov_b32 v4, 0
    """)
    vM2 = 8
    vO2 = vM2 + 2 * NG
    for g in range(NG):
        a(f"ds_read_b64 v[{vM2+2*g}:{vM2+2*g+1}], v4 offset:{8192+8*g}")
    for g in range(NG):
        a(f"ds_read_b128 v[{vO2+4*g}:{vO2+4*g+3}], v3 offset:{512*g}")
    a("s_waitcnt lgkmcnt(0)")
    a(f"v_mov_b32 v5, v{vM2}")
    for g in range(1, NG):
        a(f"v_max_f32 v5, v5, v{vM2+2*g}")
    a(f"v_mul_f32 v6, s60, v5")
    for g in range(NG):
        a(f"v_fma_f32 v{vM2+2*g}, v{vM2+2*g}, s60, -v6")
    for g in range(NG):
        a(f"v_exp_f32 v{vM2+2*g}, v{vM2+2*g}")
    a("s_nop 0")
    a(f"v_mul_f32 v7, v{vM2}, v{vM2+1}")
    for e in range(4):
        a(f"v_mul_f32 v{vO2+e}, v{vM2}, v{vO2+e}")
    for g in range(1, NG):
        a(f"v_fmac_f32 v7, v{vM2+2*g}, v{vM2+2*g+1}")
        for e in range(4):
            a(f"v_fmac_f32 v{vO2+e}, v{vM2+2*g}, v{vO2+4*g+e}")
    a(f"""
    v_rcp_f32 v7, v7
    s_nop 0
    v_mul_f32 v{vO2}, v{vO2}, v7
    v_mul_f32 v{vO2+1}, v{vO2+1}, v7
    v_mul_f32 v{vO2+2}, v{vO2+2}, v7
    v_mul_f32 v{vO2+3}, v{vO2+3}, v7
    v_cvt_pk_bf16_f32 v4, v{vO2}, v{vO2+1}
    v_cvt_pk_bf16_f32 v5, v{vO2+2}, v{vO2+3}
    v_lshlrev_b32 v3, 3, v0
    s_lshl_b32 s82, s2, 8
    buffer_store_dwordx2 v[4:5], v3, s[28:31], s82 offen
    """)
    a.label("L_mrg_end")
    a("s_endpgm")
    nv2 = max(R + 6, vO2 + 4 * NG)

    def kd(name, nv):
        nv = (nv + 3) // 4 * 4
        return f""".amdhsa_kernel {name}
  .amdhsa_next_free_vgpr {nv}
  .amdhsa_next_free_sgpr 96
  .amdhsa_accum_offset {nv}
  .amdhsa_group_segment_fixed_size 0
  .amdhsa_kernarg_size 64
  .amdhsa_user_sgpr_count 2
  .amdhsa_user_sgpr_kernarg_segment_ptr 1
  .amdhsa_system_sgpr_workgroup_id_x 1
.end_amdhsa_kernel
"""

    out = HEADER
    out += f"; config: NWG={NWG} NW={NW} HGW={HGW} T={T} ldf='{ldf}' usepk={usepk} fused={fused} bar={bar} wts={wts}\n"
    if fused:
        out += f"; @launch grid=({NWG},1,1) block=({NTH},1,1) lds={lds_bytes+16}\n"
        out += f""".amdgcn_target "amdgcn-amd-amdhsa--gfx950"
.text
.globl {MAIN}
.type {MAIN},@function
.p2align 8
"""
        out += main_text
        out += """.section .rodata,"a"
.p2align 6
"""
        out += kd(MAIN, nvgpr)
        return out
    out += f"; @launch kernel=pa_main_kernel grid=({NWG},1,1) block=({NTH},1,1) lds={lds_bytes}\n"
    out += f"; @launch kernel=pa_merge_kernel grid=(64,1,1) block=(512,1,1) lds={8192+128}\n"
    out += """.amdgcn_target "amdgcn-amd-amdhsa--gfx950"
.text
.globl pa_main_kernel
.globl pa_merge_kernel
.type pa_main_kernel,@function
.type pa_merge_kernel,@function
.p2align 8
"""
    out += a.text()
    out += """.section .rodata,"a"
.p2align 6
"""
    out += kd("pa_main_kernel", nvgpr)
    out += ".p2align 6\n"
    out += kd("pa_merge_kernel", nv2)
    return out


if __name__ == "__main__":
    import argparse
    ap = argparse.ArgumentParser()
    ap.add_argument("-o", default="standalone__paged_block_table_kv_pagedattention__decode.s")
    ap.add_argument("--NWG", type=int, default=256)
    ap.add_argument("--NW", type=int, default=16)
    ap.add_argument("--HGW", type=int, default=8)
    ap.add_argument("--T", type=int, default=4)
    ap.add_argument("--ldf", default="")
    ap.add_argument("--usepk", action="store_true")
    ap.add_argument("--stamp", action="store_true")
    ap.add_argument("--fused", action="store_true")
    ap.add_argument("--bar", type=int, default=0)
    ap.add_argument("--wts", default="")
    args = ap.parse_args()
    s = gen(args.NWG, args.NW, args.HGW, args.T, args.ldf, args.usepk, args.stamp, args.fused, args.bar, [float(x) for x in args.wts.split(',')] if args.wts else None)
    open(args.o, "w").write(s)
```

```python
import sys, struct, math

HEADER = """; Kernarg layout for this problem (64 bytes, ptrs only, base s[0:1]):
;
"""

KV_BYTES = 1028 * 131072
ML_OFF = 8 << 20
WS_BYTES = 16 << 20
SCALE_LOG2E = (128 ** -0.5) * math.log2(math.e)


def f32bits(x):
    return struct.unpack('<I', struct.pack('<f', x))[0]


class Asm:
    def __init__(self):
        self.lines = []
        self.nlab = 0

    def __call__(self, s):
        for l in s.strip('\n').split('\n'):
            self.lines.append('    ' + l.strip())

    def label(self, name):
        self.lines.append(name + ':')

    def newlab(self, base):
        self.nlab += 1
        return f"L_{base}_{self.nlab}"

    def text(self):
        return '\n'.join(self.lines) + '\n'


def log2i(x):
    r = int(math.log2(x))
    assert 1 << r == x
    return r


def emit_partition(a, NS, T):
    lt = log2i(T)
    a(f"""
    s_cmp_lt_i32 s40, 1
    s_cselect_b32 s42, 8192, s40
    s_min_u32 s42, s42, 8192
    s_cmp_lt_i32 s41, 1
    s_cselect_b32 s43, 8192, s41
    s_min_u32 s43, s43, 8192
    s_add_u32 s44, s42, {T-1}
    s_lshr_b32 s44, s44, {lt}
    s_add_u32 s45, s43, {T-1}
    s_lshr_b32 s45, s45, {lt}
    s_add_u32 s82, s44, s45
    v_cvt_f32_u32 v3, s44
    v_cvt_f32_u32 v4, s82
    v_rcp_f32 v4, v4
    s_nop 0
    v_mul_f32 v3, v3, v4
    v_mul_f32 v3, 0x{f32bits(float(NS)):08x}, v3
    v_add_f32 v3, 0.5, v3
    v_cvt_u32_f32 v3, v3
    s_nop 0
    v_readfirstlane_b32 s46, v3
    s_nop 3
    s_max_u32 s46, s46, 1
    s_min_u32 s46, s46, {NS-1}
    """)


def emit_fused_tail(a, NS, NW, HGW, lds_bytes):
    NTH = NW * 64
    NHD = HGW * 4
    NG = NTH // (NHD * 32)
    NI = (NS - 1 + NG - 1) // NG
    lds_flag = lds_bytes
    a.label("L_pub_rest")
    a("s_mov_b64 exec, s[84:85]")
    a.label("L_pub_done")
    a(f"""
    s_waitcnt vmcnt(0)
    s_barrier
    s_mov_b32 s32, s16
    s_and_b32 s33, s17, 0xffff
    s_mov_b32 s34, 256
    s_mov_b32 s28, s14
    s_and_b32 s29, s15, 0xffff
    s_mov_b32 s30, 16384
    s_cmp_lg_u32 s56, 0
    s_cbranch_scc1 L_wait_flag
    s_lshl_b32 s82, s49, {log2i(8//HGW)}
    s_add_u32 s82, s82, s48
    s_lshl_b32 s82, s82, 2
    v_mov_b32 v3, 0
    v_mov_b32 v4, 1
    v_cmp_eq_u32 vcc, 0, v0
    s_and_saveexec_b64 s[84:85], vcc
    buffer_atomic_add v4, v3, s[32:35], s82 offen sc0
    s_waitcnt vmcnt(0)
    v_mov_b32 v3, {lds_flag}
    ds_write_b32 v3, v4
    s_waitcnt lgkmcnt(0)
    s_mov_b64 exec, s[84:85]
    """)
    a.label("L_wait_flag")
    a(f"""
    s_barrier
    v_mov_b32 v3, {lds_flag}
    ds_read_b32 v4, v3
    s_waitcnt lgkmcnt(0)
    v_readfirstlane_b32 s82, v4
    s_nop 3
    s_add_u32 s82, s82, 1
    s_cmp_lg_u32 s82, s51
    s_cbranch_scc1 L_main_end
    """)
    lh = log2i(NHD)
    vML = 8
    vOO = (vML + 2 * NI + 3) // 4 * 4
    a(f"""
    s_sub_u32 s47, s47, s50
    v_and_b32 v1, 31, v0
    v_bfe_u32 v2, v0, 5, {lh}
    v_lshrrev_b32 v3, {5+lh}, v0
    s_lshl_b32 s83, s48, {lh}
    v_add_u32 v2, s83, v2
    v_lshlrev_b32 v4, 14, v3
    v_lshl_add_u32 v4, v1, 4, v4
    v_lshl_add_u32 v4, v2, 9, v4
    v_mul_u32_u24 v5, {NS*8}, v2
    v_lshl_add_u32 v5, v3, 3, v5
    s_lshl_b32 s82, s47, 14
    s_lshl_b32 s83, s47, 3
    s_add_u32 s83, s83, 0x{ML_OFF:x}
    v_mov_b32 v6, 0x{WS_BYTES:x}
    """)
    tA, tB = vOO + 4 * NI, vOO + 4 * NI + 1
    for i in range(NI):
        a(f"""
        v_add_u32 v{tA}, {NG*i}, v3
        v_cmp_gt_u32 vcc, s51, v{tA}
        v_add_u32 v{tA}, {NG*i*16384}, v4
        v_add_u32 v{tB}, {NG*i*8}, v5
        v_cndmask_b32 v{tA}, v6, v{tA}, vcc
        v_cndmask_b32 v{tB}, v6, v{tB}, vcc
        buffer_load_dwordx2 v[{vML+2*i}:{vML+2*i+1}], v{tB}, s[36:39], s83 offen sc1
        buffer_load_dwordx4 v[{vOO+4*i}:{vOO+4*i+3}], v{tA}, s[36:39], s82 offen sc1
        """)
    a("s_waitcnt vmcnt(0)")
    for i in range(NI):
        a(f"""
        v_add_u32 v{tA}, {NG*i}, v3
        v_cmp_gt_u32 vcc, s51, v{tA}
        v_mov_b32 v7, 0xf149f2ca
        s_nop 0
        v_cndmask_b32 v{vML+2*i}, v7, v{vML+2*i}, vcc
        """)
    R = (vOO + 4 * NI + 2 + 3) // 4 * 4
    a(f"v_mov_b32 v{R+4}, v{vML}")
    for i in range(1, NI):
        a(f"v_max_f32 v{R+4}, v{R+4}, v{vML+2*i}")
    a(f"v_mul_f32 v6, s60, v{R+4}")
    for i in range(NI):
        a(f"v_fma_f32 v{vML+2*i}, v{vML+2*i}, s60, -v6")
    for i in range(NI):
        a(f"v_exp_f32 v{vML+2*i}, v{vML+2*i}")
    a("s_nop 0")
    a(f"v_mul_f32 v{R+5}, v{vML}, v{vML+1}")
    for e in range(4):
        a(f"v_mul_f32 v{R+e}, v{vML}, v{vOO+e}")
    for i in range(1, NI):
        a(f"v_fmac_f32 v{R+5}, v{vML+2*i}, v{vML+2*i+1}")
        for e in range(4):
            a(f"v_fmac_f32 v{R+e}, v{vML+2*i}, v{vOO+4*i+e}")
    a(f"""
    v_lshlrev_b32 v4, 4, v0
    ds_write_b128 v4, v[{R}:{R+3}]
    v_lshrrev_b32 v5, 5, v0
    v_lshlrev_b32 v5, 3, v5
    ds_write_b64 v5, v[{R+4}:{R+5}] offset:16384
    s_waitcnt lgkmcnt(0)
    s_barrier
    s_cmp_ge_u32 s56, {NHD*32//64}
    s_cbranch_scc1 L_main_end
    """)
    vM2 = 8
    vO2 = (vM2 + 2 * NG + 3) // 4 * 4
    for g in range(NG):
        a(f"ds_read_b64 v[{vM2+2*g}:{vM2+2*g+1}], v5 offset:{16384+NHD*8*g}")
    for g in range(NG):
        a(f"ds_read_b128 v[{vO2+4*g}:{vO2+4*g+3}], v4 offset:{NHD*512*g}")
    a("s_waitcnt lgkmcnt(0)")
    a(f"v_mov_b32 v3, v{vM2}")
    for g in range(1, NG):
        a(f"v_max_f32 v3, v3, v{vM2+2*g}")
    a(f"v_mul_f32 v6, s60, v3")
    for g in range(NG):
        a(f"v_fma_f32 v{vM2+2*g}, v{vM2+2*g}, s60, -v6")
    for g in range(NG):
        a(f"v_exp_f32 v{vM2+2*g}, v{vM2+2*g}")
    a("s_nop 0")
    a(f"v_mul_f32 v7, v{vM2}, v{vM2+1}")
    for e in range(4):
        a(f"v_mul_f32 v{vO2+e}, v{vM2}, v{vO2+e}")
    for g in range(1, NG):
        a(f"v_fmac_f32 v7, v{vM2+2*g}, v{vM2+2*g+1}")
        for e in range(4):
            a(f"v_fmac_f32 v{vO2+e}, v{vM2+2*g}, v{vO2+4*g+e}")
    a(f"""
    v_rcp_f32 v7, v7
    s_nop 0
    v_mul_f32 v{vO2}, v{vO2}, v7
    v_mul_f32 v{vO2+1}, v{vO2+1}, v7
    v_mul_f32 v{vO2+2}, v{vO2+2}, v7
    v_mul_f32 v{vO2+3}, v{vO2+3}, v7
    v_cvt_pk_bf16_f32 v4, v{vO2}, v{vO2+1}
    v_cvt_pk_bf16_f32 v5, v{vO2+2}, v{vO2+3}
    v_lshlrev_b32 v3, 3, v0
    s_lshl_b32 s82, s49, 13
    s_lshl_b32 s83, s48, {lh+8}
    s_add_u32 s82, s82, s83
    buffer_store_dwordx2 v[4:5], v3, s[28:31], s82 offen
    """)
    return R + 6


def gen(NWG=256, NW=16, HGW=8, T=4, ldf="", usepk=False, stamp=False, fused=False, bar=0):
    NS = NWG * HGW // 8
    WPS = 8 // HGW
    P = NW // HGW
    lt = log2i(T)
    TPB = 16 // T
    NTH = NW * 64
    a = Asm()
    MAIN = "standalone__paged_block_table_kv_pagedattention__decode_kernel" if fused else "pa_main_kernel"
    stf = "sc1" if fused else ""

    vKA = 36
    vKB = vKA + 4 * T
    vVA = vKB + 4 * T
    vVB = vVA + 4 * T
    nvgpr = vVB + 4 * T
    sA, sB = 66, 74
    vS = 20
    vT = 28

    lds_ml = NW * 2048
    lds_bytes = lds_ml + NW * 4 * 8

    a.label(MAIN)
    a(f"""
    s_cmp_ge_u32 s2, {NWG}
    s_cbranch_scc1 L_main_end
    {'s_memrealtime s[88:89]' if stamp else ''}
    s_load_dwordx4 s[4:7], s[0:1], 0
    s_load_dwordx4 s[8:11], s[0:1], 16
    s_load_dwordx4 s[12:15], s[0:1], 32
    s_load_dwordx4 s[16:19], s[0:1], 48
    v_lshrrev_b32 v3, 6, v0
    v_and_b32 v1, 63, v0
    v_readfirstlane_b32 s56, v3
    v_lshlrev_b32 v2, 2, v1
    v_lshlrev_b32 v1, 4, v1
    s_waitcnt lgkmcnt(0)
    s_load_dwordx2 s[40:41], s[12:13], 0
    s_mov_b32 s20, s6
    s_and_b32 s21, s7, 0xffff
    s_mov_b32 s22, 0x{KV_BYTES:x}
    s_mov_b32 s23, 0x00020000
    s_mov_b32 s24, s8
    s_and_b32 s25, s9, 0xffff
    s_mov_b32 s26, 0x{KV_BYTES:x}
    s_mov_b32 s27, 0x00020000
    s_mov_b32 s28, s4
    s_and_b32 s29, s5, 0xffff
    s_mov_b32 s30, 16384
    s_mov_b32 s31, 0x00020000
    s_mov_b32 s32, s10
    s_and_b32 s33, s11, 0xffff
    s_mov_b32 s34, 4096
    s_mov_b32 s35, 0x00020000
    s_mov_b32 s36, s18
    s_and_b32 s37, s19, 0xffff
    s_mov_b32 s38, 0x{WS_BYTES:x}
    s_mov_b32 s39, 0x00020000
    s_mov_b32 s60, 0x{f32bits(SCALE_LOG2E):08x}
    s_lshr_b32 s47, s2, {log2i(WPS)}
    s_and_b32 s48, s2, {WPS-1}
    s_and_b32 s58, s56, {HGW-1}
    s_lshr_b32 s57, s56, {log2i(HGW)}
    s_lshl_b32 s82, s48, {log2i(HGW)}
    s_add_u32 s58, s58, s82
    s_waitcnt lgkmcnt(0)
    """)
    emit_partition(a, NS, T)
    a(f"""
    s_cmp_ge_u32 s47, s46
    s_cselect_b32 s49, 1, 0
    s_cselect_b32 s82, s46, 0
    s_cselect_b32 s52, s45, s44
    s_cselect_b32 s53, s43, s42
    s_cselect_b32 s83, s41, s40
    s_sub_u32 s50, s47, s82
    s_sub_u32 s84, {NS}, s46
    s_cmp_ge_u32 s47, s46
    s_cselect_b32 s51, s84, s46
    s_cmp_lt_i32 s83, 1
    s_cselect_b32 s30, 0, 16384
    v_cvt_f32_u32 v3, s52
    v_cvt_f32_u32 v4, s51
    v_rcp_f32 v4, v4
    s_add_u32 s84, s50, 1
    v_cvt_f32_u32 v5, s50
    v_cvt_f32_u32 v6, s84
    v_mul_f32 v3, v3, v4
    v_mul_f32 v5, v5, v3
    v_mul_f32 v6, v6, v3
    v_cvt_u32_f32 v5, v5
    v_cvt_u32_f32 v6, v6
    s_nop 0
    v_readfirstlane_b32 s54, v5
    v_readfirstlane_b32 s55, v6
    s_nop 3
    s_min_u32 s54, s54, s52
    s_min_u32 s55, s55, s52
    s_cmp_eq_u32 s84, s51
    s_cselect_b32 s55, s52, s55
    s_lshr_b32 s59, s54, {log2i(TPB)}
    s_lshl_b32 s82, s49, 9
    s_add_u32 s82, s82, s59
    s_lshl_b32 s82, s82, 2
    buffer_load_dword v2, v2, s[32:35], s82 offen
    s_lshl_b32 s82, s49, 13
    s_lshl_b32 s83, s58, 10
    s_add_u32 s82, s82, s83
    buffer_load_dwordx4 v[4:7], v1, s[28:31], s82 offen
    s_lshl_b32 s61, s55, {lt}
    s_min_u32 s61, s61, s53
    s_add_u32 s64, s54, s57
    s_mov_b32 s63, s64
    s_sub_u32 s62, s55, s54
    {'' if bar else 's_sub_u32 s62, s62, s57'}
    s_add_i32 s62, s62, {2*P-1}
    s_max_i32 s62, s62, 0
    s_lshr_b32 s62, s62, {log2i(2*P)}
    s_lshl_b32 s65, s58, 10
    v_mov_b32 v8, 0
    v_mov_b32 v9, 0
    v_mov_b32 v10, 0
    v_mov_b32 v11, 0
    v_mov_b32 v12, 0
    v_mov_b32 v13, 0
    v_mov_b32 v14, 0
    v_mov_b32 v15, 0
    v_mov_b32 v16, 0xf149f2ca
    v_mov_b32 v17, 0
    s_waitcnt vmcnt(1)
    """)

    def calc_off(sO):
        a(f"""
        s_lshr_b32 s82, s63, {log2i(TPB)}
        s_sub_u32 s82, s82, s59
        s_and_b32 s82, s82, 63
        v_readlane_b32 s83, v2, s82
        s_and_b32 s84, s63, {TPB-1}
        s_lshl_b32 s84, s84, {13+lt}
        s_add_u32 s84, s84, s65
        s_lshl_b32 s83, s83, 17
        s_add_u32 s83, s83, s84
        s_cmp_lt_u32 s63, s55
        s_cselect_b32 s{sO}, s83, 0x{KV_BYTES:x}
        s_cselect_b32 s84, 8192, 0
        """)
        for t in range(1, T):
            a(f"s_add_u32 s{sO+t}, s{sO+t-1}, s84")

    def issue(vB, srd, sO):
        for t in range(T):
            a(f"buffer_load_dwordx4 v[{vB+4*t}:{vB+4*t+3}], v1, s[{srd}:{srd+3}], s{sO+t} offen {ldf}")

    calc_off(sA)
    issue(vKA, 20, sA)
    issue(vVA, 24, sA)
    a(f"s_add_u32 s63, s63, {P}")
    calc_off(sB)
    issue(vKB, 20, sB)
    issue(vVB, 24, sB)
    a(f"""
    s_add_u32 s63, s63, {P}
    {'s_memrealtime s[90:91]' if stamp else ''}
    {'s_waitcnt vmcnt(' + str(3*T) + ')' if stamp else ''}
    {'s_memrealtime s[92:93]' if stamp else ''}
    s_cmp_eq_u32 s62, 0
    s_cbranch_scc1 L_loop_done
    """)

    def half(vK, vV, sO):
        a(f"s_waitcnt vmcnt({3*T})")
        for i in range(4):
            for t in range(T):
                if i == 0:
                    a(f"v_dot2_f32_bf16 v{vS+t}, v{vK+4*t+i}, v{4+i}, 0")
                else:
                    a(f"v_dot2_f32_bf16 v{vS+t}, v{vK+4*t+i}, v{4+i}, v{vS+t}")
        calc_off(sO)
        issue(vK, 20, sO)
        for r in (8, 4, 2, 1):
            for t in range(T):
                a(f"v_add_f32_dpp v{vS+t}, v{vS+t}, v{vS+t} row_ror:{r} row_mask:0xf bank_mask:0xf")
            if T < 3:
                a("s_nop 1")
        lab = a.newlab("nomask")
        a(f"""
        s_lshl_b32 s82, s64, {lt}
        s_sub_i32 s82, s61, s82
        """)
        for t in range(T - 1, -1, -1):
            a(f"""
            s_cmp_gt_i32 s82, {t}
            s_cbranch_scc1 {lab}
            v_mov_b32 v{vS+t}, 0xff800000
            """)
        a.label(lab)
        if T == 2:
            a(f"v_max3_f32 v18, v{vS}, v{vS+1}, v16")
        else:
            a(f"v_max3_f32 v18, v{vS}, v{vS+1}, v16")
            for t in range(2, T, 2):
                a(f"v_max3_f32 v18, v{vS+t}, v{vS+t+1}, v18")
        a(f"""
        v_mul_f32 v3, s60, v18
        v_fma_f32 v19, v16, s60, -v3
        """)
        for t in range(T):
            a(f"v_fma_f32 v{vS+t}, v{vS+t}, s60, -v3")
        a("v_exp_f32 v19, v19")
        for t in range(T):
            a(f"v_exp_f32 v{vS+t}, v{vS+t}")
        a("v_mov_b32 v16, v18")
        for i in range(8):
            a(f"v_mul_f32 v{8+i}, v19, v{8+i}")
        a(f"v_mul_f32 v17, v19, v17")
        for t in range(T):
            a(f"v_add_f32 v17, v17, v{vS+t}")
        a(f"s_waitcnt vmcnt({3*T})")
        for t in range(T):
            for i in range(4):
                a(f"v_lshlrev_b32 v{vT+2*i}, 16, v{vV+4*t+i}")
                a(f"v_and_b32 v{vT+2*i+1}, 0xffff0000, v{vV+4*t+i}")
            if usepk:
                p = vS + t
                for i in range(4):
                    if p % 2 == 0:
                        a(f"v_pk_fma_f32 v[{8+2*i}:{9+2*i}], v[{vT+2*i}:{vT+2*i+1}], v[{p}:{p+1}], v[{8+2*i}:{9+2*i}] op_sel_hi:[1,0,1]")
                    else:
                        a(f"v_pk_fma_f32 v[{8+2*i}:{9+2*i}], v[{vT+2*i}:{vT+2*i+1}], v[{p-1}:{p}], v[{8+2*i}:{9+2*i}] op_sel:[0,1,0] op_sel_hi:[1,1,1]")
            else:
                for i in range(8):
                    a(f"v_fmac_f32 v{8+i}, v{vS+t}, v{vT+i}")
        issue(vV, 24, sO)
        a(f"""
        s_add_u32 s63, s63, {P}
        s_add_u32 s64, s64, {P}
        """)

    a.label("L_loop")
    half(vKA, vVA, sA)
    if bar == 2:
        a("s_barrier")
    half(vKB, vVB, sB)
    if bar:
        a("s_barrier")
    a(f"""
    s_sub_u32 s62, s62, 1
    s_cmp_lg_u32 s62, 0
    s_cbranch_scc1 L_loop
    """)
    a.label("L_loop_done")
    if stamp:
        a("""
        s_memrealtime s[94:95]
        s_waitcnt lgkmcnt(0)
        v_mov_b32 v20, s88
        v_mov_b32 v21, s90
        v_mov_b32 v22, s92
        v_mov_b32 v23, s94
        s_lshl_b32 s82, s2, 4
        s_add_u32 s82, s82, s56
        s_lshl_b32 s82, s82, 4
        s_add_u32 s82, s82, 0xc00000
        v_mov_b32 v3, 0
        buffer_store_dwordx4 v[20:23], v3, s[36:39], s82 offen
        s_nop 1
        """)
    NOUT = HGW * 512
    EPT = max(1, NOUT // NTH)
    NACT = NOUT // EPT
    a(f"""
    s_waitcnt vmcnt(0)
    v_lshlrev_b32 v3, 1, v1
    s_lshl_b32 s82, s56, 11
    v_add_u32 v3, s82, v3
    ds_write_b128 v3, v[8:11]
    ds_write_b128 v3, v[12:15] offset:16
    v_lshrrev_b32 v3, 8, v1
    v_lshlrev_b32 v3, 3, v3
    s_lshl_b32 s82, s56, 5
    s_add_u32 s82, s82, {lds_ml}
    v_add_u32 v3, s82, v3
    ds_write_b64 v3, v[16:17]
    s_waitcnt lgkmcnt(0)
    s_barrier
    """)
    if NACT < NTH:
        a(f"""
        s_cmp_ge_u32 s56, {NACT//64}
        s_cbranch_scc1 {'L_pub_done' if fused else 'L_main_end'}
        """)
    vM = 20
    vO = 20 + 2 * P
    vO += vO % 2
    if EPT >= 4:
        vO = (vO + 3) // 4 * 4
    assert vO + P * EPT <= nvgpr
    a(f"""
    v_lshlrev_b32 v3, {log2i(EPT)+2}, v0
    v_lshrrev_b32 v4, 9, v3
    v_lshlrev_b32 v5, 3, v4
    v_add_u32 v5, {lds_ml}, v5
    """)
    for p in range(P):
        a(f"ds_read_b64 v[{vM+2*p}:{vM+2*p+1}], v5 offset:{p*HGW*32}")
    for p in range(P):
        r = vO + p * EPT
        if EPT == 8:
            a(f"ds_read_b128 v[{r}:{r+3}], v3 offset:{p*HGW*2048}")
            a(f"ds_read_b128 v[{r+4}:{r+7}], v3 offset:{p*HGW*2048+16}")
        elif EPT == 4:
            a(f"ds_read_b128 v[{r}:{r+3}], v3 offset:{p*HGW*2048}")
        elif EPT == 2:
            a(f"ds_read_b64 v[{r}:{r+1}], v3 offset:{p*HGW*2048}")
        else:
            a(f"ds_read_b32 v{r}, v3 offset:{p*HGW*2048}")
    a(f"s_waitcnt lgkmcnt({min(P*(2 if EPT==8 else 1),15)})")
    a(f"v_mov_b32 v16, v{vM}")
    for p in range(1, P):
        a(f"v_max_f32 v16, v16, v{vM+2*p}")
    a("v_mul_f32 v6, s60, v16")
    for p in range(P):
        a(f"v_fma_f32 v{vM+2*p}, v{vM+2*p}, s60, -v6")
    for p in range(P):
        a(f"v_exp_f32 v{vM+2*p}, v{vM+2*p}")
    a("s_nop 0")
    a(f"v_mul_f32 v17, v{vM}, v{vM+1}")
    for p in range(1, P):
        a(f"v_fmac_f32 v17, v{vM+2*p}, v{vM+2*p+1}")
    a("s_waitcnt lgkmcnt(0)")
    for e in range(EPT):
        a(f"v_mul_f32 v{8+e}, v{vM}, v{vO+e}")
    for p in range(1, P):
        for e in range(EPT):
            a(f"v_fmac_f32 v{8+e}, v{vM+2*p}, v{vO+p*EPT+e}")
    a(f"""
    s_lshl_b32 s82, s47, 14
    s_lshl_b32 s83, s48, {log2i(HGW)+11}
    s_add_u32 s82, s82, s83
    """)
    if EPT == 8:
        a(f"buffer_store_dwordx4 v[8:11], v3, s[36:39], s82 offen {stf}")
        a(f"buffer_store_dwordx4 v[12:15], v3, s[36:39], s82 offen offset:16 {stf}")
    elif EPT == 4:
        a(f"buffer_store_dwordx4 v[8:11], v3, s[36:39], s82 offen {stf}")
    elif EPT == 2:
        a(f"buffer_store_dwordx2 v[8:9], v3, s[36:39], s82 offen {stf}")
    else:
        a(f"buffer_store_dword v8, v3, s[36:39], s82 offen {stf}")
    a(f"""
    v_and_b32 v5, 511, v3
    v_cmp_eq_u32 vcc, 0, v5
    s_lshl_b32 s83, s48, {log2i(HGW)+2}
    v_add_u32 v4, s83, v4
    v_mul_u32_u24 v4, {NS*8}, v4
    s_lshl_b32 s82, s47, 3
    s_add_u32 s82, s82, 0x{ML_OFF:x}
    s_and_saveexec_b64 s[84:85], vcc
    s_cbranch_execz {'L_pub_rest' if fused else 'L_main_end'}
    buffer_store_dwordx2 v[16:17], v4, s[36:39], s82 offen {stf}
    """)
    if fused:
        nvgpr = max(nvgpr, emit_fused_tail(a, NS, NW, HGW, lds_bytes))
    a.label("L_main_end")
    a("s_endpgm")

    main_text = a.text()
    NG = 16
    NI = (NS - 1 + NG - 1) // NG
    a.lines.append(".p2align 8")
    a.label("pa_merge_kernel")
    a(f"""
    s_cmp_ge_u32 s2, 64
    s_cbranch_scc1 L_mrg_end
    s_load_dwordx4 s[12:15], s[0:1], 32
    s_load_dwordx4 s[16:19], s[0:1], 48
    v_lshrrev_b32 v2, 5, v0
    v_and_b32 v1, 31, v0
    s_waitcnt lgkmcnt(0)
    s_load_dwordx2 s[40:41], s[12:13], 0
    s_mov_b32 s36, s18
    s_and_b32 s37, s19, 0xffff
    s_mov_b32 s38, 0x{WS_BYTES:x}
    s_mov_b32 s39, 0x00020000
    s_mov_b32 s28, s14
    s_and_b32 s29, s15, 0xffff
    s_mov_b32 s30, 16384
    s_mov_b32 s31, 0x00020000
    s_mov_b32 s60, 0x{f32bits(SCALE_LOG2E):08x}
    s_lshr_b32 s49, s2, 5
    s_and_b32 s58, s2, 31
    s_waitcnt lgkmcnt(0)
    """)
    emit_partition(a, NS, T)
    a(f"""
    s_sub_u32 s84, {NS}, s46
    s_cmp_eq_u32 s49, 0
    s_cselect_b32 s47, 0, s46
    s_cselect_b32 s51, s46, s84
    """)
    vML = 8
    vOO = vML + 2 * NI
    vOO = (vOO + 3) // 4 * 4
    a(f"""
    v_lshlrev_b32 v3, 14, v2
    v_lshl_add_u32 v3, v1, 4, v3
    v_lshlrev_b32 v4, 3, v2
    s_lshl_b32 s82, s47, 14
    s_lshl_b32 s83, s58, 9
    s_add_u32 s82, s82, s83
    s_mul_i32 s83, s58, {NS*8}
    s_lshl_b32 s84, s47, 3
    s_add_u32 s83, s83, s84
    s_add_u32 s83, s83, 0x{ML_OFF:x}
    v_mov_b32 v6, 0x{WS_BYTES:x}
    """)
    for i in range(NI):
        a(f"""
        v_add_u32 v5, {NG*i}, v2
        v_cmp_gt_u32 vcc, s51, v5
        v_add_u32 v5, {NG*i*16384}, v3
        v_add_u32 v7, {NG*i*8}, v4
        v_cndmask_b32 v5, v6, v5, vcc
        v_cndmask_b32 v7, v6, v7, vcc
        buffer_load_dwordx2 v[{vML+2*i}:{vML+2*i+1}], v7, s[36:39], s83 offen
        buffer_load_dwordx4 v[{vOO+4*i}:{vOO+4*i+3}], v5, s[36:39], s82 offen
        """)
    a("s_waitcnt vmcnt(0)")
    for i in range(NI):
        a(f"""
        v_add_u32 v5, {NG*i}, v2
        v_cmp_gt_u32 vcc, s51, v5
        v_mov_b32 v7, 0xf149f2ca
        s_nop 0
        v_cndmask_b32 v{vML+2*i}, v7, v{vML+2*i}, vcc
        """)
    R = vOO + 4 * NI
    R = (R + 3) // 4 * 4
    a(f"v_mov_b32 v{R+4}, v{vML}")
    for i in range(1, NI):
        a(f"v_max_f32 v{R+4}, v{R+4}, v{vML+2*i}")
    a(f"v_mul_f32 v6, s60, v{R+4}")
    for i in range(NI):
        a(f"v_fma_f32 v{vML+2*i}, v{vML+2*i}, s60, -v6")
    for i in range(NI):
        a(f"v_exp_f32 v{vML+2*i}, v{vML+2*i}")
    a("s_nop 0")
    a(f"v_mul_f32 v{R+5}, v{vML}, v{vML+1}")
    for e in range(4):
        a(f"v_mul_f32 v{R+e}, v{vML}, v{vOO+e}")
    for i in range(1, NI):
        a(f"v_fmac_f32 v{R+5}, v{vML+2*i}, v{vML+2*i+1}")
        for e in range(4):
            a(f"v_fmac_f32 v{R+e}, v{vML+2*i}, v{vOO+4*i+e}")
    a(f"""
    v_lshlrev_b32 v3, 4, v0
    ds_write_b128 v3, v[{R}:{R+3}]
    v_lshlrev_b32 v4, 3, v2
    ds_write_b64 v4, v[{R+4}:{R+5}] offset:8192
    s_waitcnt lgkmcnt(0)
    s_barrier
    v_cmp_gt_u32 vcc, 32, v0
    s_and_saveexec_b64 s[84:85], vcc
    s_cbranch_execz L_mrg_end
    v_mov_b32 v4, 0
    """)
    vM2 = 8
    vO2 = vM2 + 2 * NG
    for g in range(NG):
        a(f"ds_read_b64 v[{vM2+2*g}:{vM2+2*g+1}], v4 offset:{8192+8*g}")
    for g in range(NG):
        a(f"ds_read_b128 v[{vO2+4*g}:{vO2+4*g+3}], v3 offset:{512*g}")
    a("s_waitcnt lgkmcnt(0)")
    a(f"v_mov_b32 v5, v{vM2}")
    for g in range(1, NG):
        a(f"v_max_f32 v5, v5, v{vM2+2*g}")
    a(f"v_mul_f32 v6, s60, v5")
    for g in range(NG):
        a(f"v_fma_f32 v{vM2+2*g}, v{vM2+2*g}, s60, -v6")
    for g in range(NG):
        a(f"v_exp_f32 v{vM2+2*g}, v{vM2+2*g}")
    a("s_nop 0")
    a(f"v_mul_f32 v7, v{vM2}, v{vM2+1}")
    for e in range(4):
        a(f"v_mul_f32 v{vO2+e}, v{vM2}, v{vO2+e}")
    for g in range(1, NG):
        a(f"v_fmac_f32 v7, v{vM2+2*g}, v{vM2+2*g+1}")
        for e in range(4):
            a(f"v_fmac_f32 v{vO2+e}, v{vM2+2*g}, v{vO2+4*g+e}")
    a(f"""
    v_rcp_f32 v7, v7
    s_nop 0
    v_mul_f32 v{vO2}, v{vO2}, v7
    v_mul_f32 v{vO2+1}, v{vO2+1}, v7
    v_mul_f32 v{vO2+2}, v{vO2+2}, v7
    v_mul_f32 v{vO2+3}, v{vO2+3}, v7
    v_cvt_pk_bf16_f32 v4, v{vO2}, v{vO2+1}
    v_cvt_pk_bf16_f32 v5, v{vO2+2}, v{vO2+3}
    v_lshlrev_b32 v3, 3, v0
    s_lshl_b32 s82, s2, 8
    buffer_store_dwordx2 v[4:5], v3, s[28:31], s82 offen
    """)
    a.label("L_mrg_end")
    a("s_endpgm")
    nv2 = max(R + 6, vO2 + 4 * NG)

    def kd(name, nv):
        nv = (nv + 3) // 4 * 4
        return f""".amdhsa_kernel {name}
  .amdhsa_next_free_vgpr {nv}
  .amdhsa_next_free_sgpr 96
  .amdhsa_accum_offset {nv}
  .amdhsa_group_segment_fixed_size 0
  .amdhsa_kernarg_size 64
  .amdhsa_user_sgpr_count 2
  .amdhsa_user_sgpr_kernarg_segment_ptr 1
  .amdhsa_system_sgpr_workgroup_id_x 1
.end_amdhsa_kernel
"""

    out = HEADER
    out += f"; config: NWG={NWG} NW={NW} HGW={HGW} T={T} ldf='{ldf}' usepk={usepk} fused={fused} bar={bar}\n"
    if fused:
        out += f"; @launch grid=({NWG},1,1) block=({NTH},1,1) lds={lds_bytes+16}\n"
        out += f""".amdgcn_target "amdgcn-amd-amdhsa--gfx950"
.text
.globl {MAIN}
.type {MAIN},@function
.p2align 8
"""
        out += main_text
        out += """.section .rodata,"a"
.p2align 6
"""
        out += kd(MAIN, nvgpr)
        return out
    out += f"; @launch kernel=pa_main_kernel grid=({NWG},1,1) block=({NTH},1,1) lds={lds_bytes}\n"
    out += f"; @launch kernel=pa_merge_kernel grid=(64,1,1) block=(512,1,1) lds={8192+128}\n"
    out += """.amdgcn_target "amdgcn-amd-amdhsa--gfx950"
.text
.globl pa_main_kernel
.globl pa_merge_kernel
.type pa_main_kernel,@function
.type pa_merge_kernel,@function
.p2align 8
"""
    out += a.text()
    out += """.section .rodata,"a"
.p2align 6
"""
    out += kd("pa_main_kernel", nvgpr)
    out += ".p2align 6\n"
    out += kd("pa_merge_kernel", nv2)
    return out


if __name__ == "__main__":
    import argparse
    ap = argparse.ArgumentParser()
    ap.add_argument("-o", default="standalone__paged_block_table_kv_pagedattention__decode.s")
    ap.add_argument("--NWG", type=int, default=256)
    ap.add_argument("--NW", type=int, default=16)
    ap.add_argument("--HGW", type=int, default=8)
    ap.add_argument("--T", type=int, default=4)
    ap.add_argument("--ldf", default="")
    ap.add_argument("--usepk", action="store_true")
    ap.add_argument("--stamp", action="store_true")
    ap.add_argument("--fused", action="store_true")
    ap.add_argument("--bar", type=int, default=0)
    args = ap.parse_args()
    s = gen(args.NWG, args.NW, args.HGW, args.T, args.ldf, args.usepk, args.stamp, args.fused, args.bar)
    open(args.o, "w").write(s)
```

```python
import sys, struct, math

HEADER = """; Kernarg layout for this problem (64 bytes, ptrs only, base s[0:1]):
;
"""

KV_BYTES = 1028 * 131072
ML_OFF = 8 << 20
WS_BYTES = 16 << 20
SCALE_LOG2E = (128 ** -0.5) * math.log2(math.e)


def f32bits(x):
    return struct.unpack('<I', struct.pack('<f', x))[0]


class Asm:
    def __init__(self):
        self.lines = []
        self.nlab = 0

    def __call__(self, s):
        for l in s.strip('\n').split('\n'):
            self.lines.append('    ' + l.strip())

    def label(self, name):
        self.lines.append(name + ':')

    def newlab(self, base):
        self.nlab += 1
        return f"L_{base}_{self.nlab}"

    def text(self):
        return '\n'.join(self.lines) + '\n'


def log2i(x):
    r = int(math.log2(x))
    assert 1 << r == x
    return r


def emit_partition(a, NS, T):
    lt = log2i(T)
    a(f"""
    s_cmp_lt_i32 s40, 1
    s_cselect_b32 s42, 8192, s40
    s_min_u32 s42, s42, 8192
    s_cmp_lt_i32 s41, 1
    s_cselect_b32 s43, 8192, s41
    s_min_u32 s43, s43, 8192
    s_add_u32 s44, s42, {T-1}
    s_lshr_b32 s44, s44, {lt}
    s_add_u32 s45, s43, {T-1}
    s_lshr_b32 s45, s45, {lt}
    s_add_u32 s82, s44, s45
    v_cvt_f32_u32 v3, s44
    v_cvt_f32_u32 v4, s82
    v_rcp_f32 v4, v4
    s_nop 0
    v_mul_f32 v3, v3, v4
    v_mul_f32 v3, 0x{f32bits(float(NS)):08x}, v3
    v_add_f32 v3, 0.5, v3
    v_cvt_u32_f32 v3, v3
    s_nop 0
    v_readfirstlane_b32 s46, v3
    s_nop 3
    s_max_u32 s46, s46, 1
    s_min_u32 s46, s46, {NS-1}
    """)


def emit_fused_tail(a, NS, NW, HGW, lds_bytes):
    NTH = NW * 64
    NHD = HGW * 4
    NG = NTH // (NHD * 32)
    NI = (NS - 1 + NG - 1) // NG
    lds_flag = lds_bytes
    a.label("L_pub_rest")
    a("s_mov_b64 exec, s[84:85]")
    a.label("L_pub_done")
    a(f"""
    s_waitcnt vmcnt(0)
    s_barrier
    s_mov_b32 s32, s16
    s_and_b32 s33, s17, 0xffff
    s_mov_b32 s34, 256
    s_mov_b32 s28, s14
    s_and_b32 s29, s15, 0xffff
    s_mov_b32 s30, 16384
    s_cmp_lg_u32 s56, 0
    s_cbranch_scc1 L_wait_flag
    s_lshl_b32 s82, s49, {log2i(8//HGW)}
    s_add_u32 s82, s82, s48
    s_lshl_b32 s82, s82, 2
    v_mov_b32 v3, 0
    v_mov_b32 v4, 1
    v_cmp_eq_u32 vcc, 0, v0
    s_and_saveexec_b64 s[84:85], vcc
    buffer_atomic_add v4, v3, s[32:35], s82 offen sc0
    s_waitcnt vmcnt(0)
    v_mov_b32 v3, {lds_flag}
    ds_write_b32 v3, v4
    s_waitcnt lgkmcnt(0)
    s_mov_b64 exec, s[84:85]
    """)
    a.label("L_wait_flag")
    a(f"""
    s_barrier
    v_mov_b32 v3, {lds_flag}
    ds_read_b32 v4, v3
    s_waitcnt lgkmcnt(0)
    v_readfirstlane_b32 s82, v4
    s_nop 3
    s_add_u32 s82, s82, 1
    s_cmp_lg_u32 s82, s51
    s_cbranch_scc1 L_main_end
    """)
    lh = log2i(NHD)
    vML = 8
    vOO = (vML + 2 * NI + 3) // 4 * 4
    a(f"""
    s_sub_u32 s47, s47, s50
    v_and_b32 v1, 31, v0
    v_bfe_u32 v2, v0, 5, {lh}
    v_lshrrev_b32 v3, {5+lh}, v0
    s_lshl_b32 s83, s48, {lh}
    v_add_u32 v2, s83, v2
    v_lshlrev_b32 v4, 14, v3
    v_lshl_add_u32 v4, v1, 4, v4
    v_lshl_add_u32 v4, v2, 9, v4
    v_mul_u32_u24 v5, {NS*8}, v2
    v_lshl_add_u32 v5, v3, 3, v5
    s_lshl_b32 s82, s47, 14
    s_lshl_b32 s83, s47, 3
    s_add_u32 s83, s83, 0x{ML_OFF:x}
    v_mov_b32 v6, 0x{WS_BYTES:x}
    """)
    tA, tB = vOO + 4 * NI, vOO + 4 * NI + 1
    for i in range(NI):
        a(f"""
        v_add_u32 v{tA}, {NG*i}, v3
        v_cmp_gt_u32 vcc, s51, v{tA}
        v_add_u32 v{tA}, {NG*i*16384}, v4
        v_add_u32 v{tB}, {NG*i*8}, v5
        v_cndmask_b32 v{tA}, v6, v{tA}, vcc
        v_cndmask_b32 v{tB}, v6, v{tB}, vcc
        buffer_load_dwordx2 v[{vML+2*i}:{vML+2*i+1}], v{tB}, s[36:39], s83 offen sc1
        buffer_load_dwordx4 v[{vOO+4*i}:{vOO+4*i+3}], v{tA}, s[36:39], s82 offen sc1
        """)
    a("s_waitcnt vmcnt(0)")
    for i in range(NI):
        a(f"""
        v_add_u32 v{tA}, {NG*i}, v3
        v_cmp_gt_u32 vcc, s51, v{tA}
        v_mov_b32 v7, 0xf1800000
        s_nop 0
        v_cndmask_b32 v{vML+2*i}, v7, v{vML+2*i}, vcc
        """)
    R = (vOO + 4 * NI + 2 + 3) // 4 * 4
    a(f"v_mov_b32 v{R+4}, v{vML}")
    for i in range(1, NI):
        a(f"v_max_f32 v{R+4}, v{R+4}, v{vML+2*i}")
    a(f"v_mul_f32 v6, s60, v{R+4}")
    for i in range(NI):
        a(f"v_fma_f32 v{vML+2*i}, v{vML+2*i}, s60, -v6")
    for i in range(NI):
        a(f"v_exp_f32 v{vML+2*i}, v{vML+2*i}")
    a("s_nop 0")
    a(f"v_mul_f32 v{R+5}, v{vML}, v{vML+1}")
    for e in range(4):
        a(f"v_mul_f32 v{R+e}, v{vML}, v{vOO+e}")
    for i in range(1, NI):
        a(f"v_fmac_f32 v{R+5}, v{vML+2*i}, v{vML+2*i+1}")
        for e in range(4):
            a(f"v_fmac_f32 v{R+e}, v{vML+2*i}, v{vOO+4*i+e}")
    a(f"""
    v_lshlrev_b32 v4, 4, v0
    ds_write_b128 v4, v[{R}:{R+3}]
    v_lshrrev_b32 v5, 5, v0
    v_lshlrev_b32 v5, 3, v5
    ds_write_b64 v5, v[{R+4}:{R+5}] offset:16384
    s_waitcnt lgkmcnt(0)
    s_barrier
    s_cmp_ge_u32 s56, {NHD*32//64}
    s_cbranch_scc1 L_main_end
    """)
    vM2 = 8
    vO2 = (vM2 + 2 * NG + 3) // 4 * 4
    for g in range(NG):
        a(f"ds_read_b64 v[{vM2+2*g}:{vM2+2*g+1}], v5 offset:{16384+NHD*8*g}")
    for g in range(NG):
        a(f"ds_read_b128 v[{vO2+4*g}:{vO2+4*g+3}], v4 offset:{NHD*512*g}")
    a("s_waitcnt lgkmcnt(0)")
    a(f"v_mov_b32 v3, v{vM2}")
    for g in range(1, NG):
        a(f"v_max_f32 v3, v3, v{vM2+2*g}")
    a(f"v_mul_f32 v6, s60, v3")
    for g in range(NG):
        a(f"v_fma_f32 v{vM2+2*g}, v{vM2+2*g}, s60, -v6")
    for g in range(NG):
        a(f"v_exp_f32 v{vM2+2*g}, v{vM2+2*g}")
    a("s_nop 0")
    a(f"v_mul_f32 v7, v{vM2}, v{vM2+1}")
    for e in range(4):
        a(f"v_mul_f32 v{vO2+e}, v{vM2}, v{vO2+e}")
    for g in range(1, NG):
        a(f"v_fmac_f32 v7, v{vM2+2*g}, v{vM2+2*g+1}")
        for e in range(4):
            a(f"v_fmac_f32 v{vO2+e}, v{vM2+2*g}, v{vO2+4*g+e}")
    a(f"""
    v_rcp_f32 v7, v7
    s_nop 0
    v_mul_f32 v{vO2}, v{vO2}, v7
    v_mul_f32 v{vO2+1}, v{vO2+1}, v7
    v_mul_f32 v{vO2+2}, v{vO2+2}, v7
    v_mul_f32 v{vO2+3}, v{vO2+3}, v7
    v_cvt_pk_bf16_f32 v4, v{vO2}, v{vO2+1}
    v_cvt_pk_bf16_f32 v5, v{vO2+2}, v{vO2+3}
    v_lshlrev_b32 v3, 3, v0
    s_lshl_b32 s82, s49, 13
    s_lshl_b32 s83, s48, {lh+8}
    s_add_u32 s82, s82, s83
    buffer_store_dwordx2 v[4:5], v3, s[28:31], s82 offen
    """)
    return R + 6


def gen(NWG=256, NW=16, HGW=8, T=4, ldf="", usepk=False, stamp=False, fused=False, bar=0, wts=None, stflag=""):
    NS = NWG * HGW // 8
    WPS = 8 // HGW
    P = NW // HGW
    lt = log2i(T)
    TPB = 16 // T
    NTH = NW * 64
    a = Asm()
    MAIN = "standalone__paged_block_table_kv_pagedattention__decode_kernel" if fused else "pa_main_kernel"
    stf = "sc1" if fused else stflag

    vKA = 36
    vKB = vKA + 4 * T
    vVA = vKB + 4 * T
    vVB = vVA + 4 * T
    nvgpr = vVB + 4 * T
    sA, sB = 66, 74
    vS = 20
    vT = 28

    lds_ml = NW * 2048
    lds_bytes = lds_ml + NW * 4 * 8

    if wts is None:
        STEP = P
        wave_range = f"""
    s_add_u32 s64, s54, s57
    s_mov_b32 s63, s64
    s_sub_u32 s62, s55, s54
    {'' if bar else 's_sub_u32 s62, s62, s57'}
    s_add_i32 s62, s62, {2*P-1}
    s_max_i32 s62, s62, 0
    s_lshr_b32 s62, s62, {log2i(2*P)}
"""
    else:
        STEP = 1
        assert len(wts) == P and P <= 8
        tot = float(sum(wts)); cum = [0.0]
        for w_ in wts: cum.append(cum[-1] + w_ / tot)
        bnd = [min(255, int(round(c * 256))) for c in cum[:-1]]
        K = 0
        for i, b_ in enumerate(bnd): K |= b_ << (8 * i)
        K2 = K >> 8
        wave_range = f"""
    s_mov_b32 s84, 0x{K & 0xffffffff:x}
    s_mov_b32 s85, 0x{K >> 32:x}
    s_lshl_b32 s82, s57, 3
    s_lshr_b64 s[84:85], s[84:85], s82
    s_and_b32 s83, s84, 0xff
    s_lshr_b32 s84, s84, 8
    s_and_b32 s84, s84, 0xff
    s_sub_u32 s62, s55, s54
    s_mul_i32 s83, s83, s62
    s_lshr_b32 s83, s83, 8
    s_mul_i32 s84, s84, s62
    s_lshr_b32 s84, s84, 8
    s_add_u32 s64, s54, s83
    s_add_u32 s84, s54, s84
    s_cmp_eq_u32 s57, {P-1}
    s_cselect_b32 s55, s55, s84
    s_lshl_b32 s61, s55, {lt}
    s_min_u32 s61, s61, s53
    s_mov_b32 s63, s64
    s_sub_u32 s62, s55, s64
    s_add_u32 s62, s62, 1
    s_lshr_b32 s62, s62, 1
"""
    a.label(MAIN)
    a(f"""
    s_cmp_ge_u32 s2, {NWG}
    s_cbranch_scc1 L_main_end
    {'s_memrealtime s[88:89]' if stamp else ''}
    s_load_dwordx4 s[4:7], s[0:1], 0
    s_load_dwordx4 s[8:11], s[0:1], 16
    s_load_dwordx4 s[12:15], s[0:1], 32
    s_load_dwordx4 s[16:19], s[0:1], 48
    v_lshrrev_b32 v3, 6, v0
    v_and_b32 v1, 63, v0
    v_readfirstlane_b32 s56, v3
    v_lshlrev_b32 v2, 2, v1
    v_lshlrev_b32 v1, 4, v1
    s_waitcnt lgkmcnt(0)
    s_load_dwordx2 s[40:41], s[12:13], 0
    s_mov_b32 s20, s6
    s_and_b32 s21, s7, 0xffff
    s_mov_b32 s22, 0x{KV_BYTES:x}
    s_mov_b32 s23, 0x00020000
    s_mov_b32 s24, s8
    s_and_b32 s25, s9, 0xffff
    s_mov_b32 s26, 0x{KV_BYTES:x}
    s_mov_b32 s27, 0x00020000
    s_mov_b32 s28, s4
    s_and_b32 s29, s5, 0xffff
    s_mov_b32 s30, 16384
    s_mov_b32 s31, 0x00020000
    s_mov_b32 s32, s10
    s_and_b32 s33, s11, 0xffff
    s_mov_b32 s34, 4096
    s_mov_b32 s35, 0x00020000
    s_mov_b32 s36, s18
    s_and_b32 s37, s19, 0xffff
    s_mov_b32 s38, 0x{WS_BYTES:x}
    s_mov_b32 s39, 0x00020000
    s_mov_b32 s60, 0x{f32bits(SCALE_LOG2E):08x}
    s_lshr_b32 s47, s2, {log2i(WPS)}
    s_and_b32 s48, s2, {WPS-1}
    s_and_b32 s58, s56, {HGW-1}
    s_lshr_b32 s57, s56, {log2i(HGW)}
    s_lshl_b32 s82, s48, {log2i(HGW)}
    s_add_u32 s58, s58, s82
    s_waitcnt lgkmcnt(0)
    """)
    emit_partition(a, NS, T)
    a(f"""
    s_cmp_ge_u32 s47, s46
    s_cselect_b32 s49, 1, 0
    s_cselect_b32 s82, s46, 0
    s_cselect_b32 s52, s45, s44
    s_cselect_b32 s53, s43, s42
    s_cselect_b32 s83, s41, s40
    s_sub_u32 s50, s47, s82
    s_sub_u32 s84, {NS}, s46
    s_cmp_ge_u32 s47, s46
    s_cselect_b32 s51, s84, s46
    s_cmp_lt_i32 s83, 1
    s_cselect_b32 s30, 0, 16384
    v_cvt_f32_u32 v3, s52
    v_cvt_f32_u32 v4, s51
    v_rcp_f32 v4, v4
    s_add_u32 s84, s50, 1
    v_cvt_f32_u32 v5, s50
    v_cvt_f32_u32 v6, s84
    v_mul_f32 v3, v3, v4
    v_mul_f32 v5, v5, v3
    v_mul_f32 v6, v6, v3
    v_cvt_u32_f32 v5, v5
    v_cvt_u32_f32 v6, v6
    s_nop 0
    v_readfirstlane_b32 s54, v5
    v_readfirstlane_b32 s55, v6
    s_nop 3
    s_min_u32 s54, s54, s52
    s_min_u32 s55, s55, s52
    s_cmp_eq_u32 s84, s51
    s_cselect_b32 s55, s52, s55
    s_lshr_b32 s59, s54, {log2i(TPB)}
    s_lshl_b32 s82, s49, 9
    s_add_u32 s82, s82, s59
    s_lshl_b32 s82, s82, 2
    buffer_load_dword v2, v2, s[32:35], s82 offen
    s_lshl_b32 s82, s49, 13
    s_lshl_b32 s83, s58, 10
    s_add_u32 s82, s82, s83
    buffer_load_dwordx4 v[4:7], v1, s[28:31], s82 offen
    s_lshl_b32 s61, s55, {lt}
    s_min_u32 s61, s61, s53
    {wave_range}
    s_lshl_b32 s65, s58, 10
    v_mov_b32 v8, 0
    v_mov_b32 v9, 0
    v_mov_b32 v10, 0
    v_mov_b32 v11, 0
    v_mov_b32 v12, 0
    v_mov_b32 v13, 0
    v_mov_b32 v14, 0
    v_mov_b32 v15, 0
    v_mov_b32 v16, 0xf1800000
    v_mov_b32 v17, 0
    s_waitcnt vmcnt(1)
    """)

    def calc_off(sO):
        a(f"""
        s_lshr_b32 s82, s63, {log2i(TPB)}
        s_sub_u32 s82, s82, s59
        s_and_b32 s82, s82, 63
        v_readlane_b32 s83, v2, s82
        s_and_b32 s84, s63, {TPB-1}
        s_lshl_b32 s84, s84, {13+lt}
        s_add_u32 s84, s84, s65
        s_lshl_b32 s83, s83, 17
        s_add_u32 s83, s83, s84
        s_cmp_lt_u32 s63, s55
        s_cselect_b32 s{sO}, s83, 0x{KV_BYTES:x}
        s_cselect_b32 s84, 8192, 0
        """)
        for t in range(1, T):
            a(f"s_add_u32 s{sO+t}, s{sO+t-1}, s84")

    def issue(vB, srd, sO):
        for t in range(T):
            a(f"buffer_load_dwordx4 v[{vB+4*t}:{vB+4*t+3}], v1, s[{srd}:{srd+3}], s{sO+t} offen {ldf}")

    calc_off(sA)
    issue(vKA, 20, sA)
    issue(vVA, 24, sA)
    a(f"s_add_u32 s63, s63, {STEP}")
    calc_off(sB)
    issue(vKB, 20, sB)
    issue(vVB, 24, sB)
    a(f"""
    s_add_u32 s63, s63, {STEP}
    {'s_memrealtime s[90:91]' if stamp else ''}
    {'s_waitcnt vmcnt(' + str(3*T) + ')' if stamp else ''}
    {'s_memrealtime s[92:93]' if stamp else ''}
    s_cmp_eq_u32 s62, 0
    s_cbranch_scc1 L_loop_done
    """)

    def half(vK, vV, sO):
        a(f"s_waitcnt vmcnt({3*T})")
        for i in range(4):
            for t in range(T):
                if i == 0:
                    a(f"v_dot2_f32_bf16 v{vS+t}, v{vK+4*t+i}, v{4+i}, 0")
                else:
                    a(f"v_dot2_f32_bf16 v{vS+t}, v{vK+4*t+i}, v{4+i}, v{vS+t}")
        calc_off(sO)
        issue(vK, 20, sO)
        for r in (8, 4, 2, 1):
            for t in range(T):
                a(f"v_add_f32_dpp v{vS+t}, v{vS+t}, v{vS+t} row_ror:{r} row_mask:0xf bank_mask:0xf")
            if T < 3:
                a("s_nop 1")
        lab = a.newlab("nomask")
        a(f"""
        s_lshl_b32 s82, s64, {lt}
        s_sub_i32 s82, s61, s82
        """)
        for t in range(T - 1, -1, -1):
            a(f"""
            s_cmp_gt_i32 s82, {t}
            s_cbranch_scc1 {lab}
            v_mov_b32 v{vS+t}, 0xff800000
            """)
        a.label(lab)
        if T == 2:
            a(f"v_max3_f32 v18, v{vS}, v{vS+1}, v16")
        else:
            a(f"v_max3_f32 v18, v{vS}, v{vS+1}, v16")
            for t in range(2, T, 2):
                a(f"v_max3_f32 v18, v{vS+t}, v{vS+t+1}, v18")
        a(f"""
        v_mul_f32 v3, s60, v18
        v_fma_f32 v19, v16, s60, -v3
        """)
        for t in range(T):
            a(f"v_fma_f32 v{vS+t}, v{vS+t}, s60, -v3")
        a("v_exp_f32 v19, v19")
        for t in range(T):
            a(f"v_exp_f32 v{vS+t}, v{vS+t}")
        a("v_mov_b32 v16, v18")
        for i in range(8):
            a(f"v_mul_f32 v{8+i}, v19, v{8+i}")
        a(f"v_mul_f32 v17, v19, v17")
        for t in range(T):
            a(f"v_add_f32 v17, v17, v{vS+t}")
        a(f"s_waitcnt vmcnt({3*T})")
        for t in range(T):
            for i in range(4):
                a(f"v_lshlrev_b32 v{vT+2*i}, 16, v{vV+4*t+i}")
                a(f"v_and_b32 v{vT+2*i+1}, 0xffff0000, v{vV+4*t+i}")
            if usepk:
                p = vS + t
                for i in range(4):
                    if p % 2 == 0:
                        a(f"v_pk_fma_f32 v[{8+2*i}:{9+2*i}], v[{vT+2*i}:{vT+2*i+1}], v[{p}:{p+1}], v[{8+2*i}:{9+2*i}] op_sel_hi:[1,0,1]")
                    else:
                        a(f"v_pk_fma_f32 v[{8+2*i}:{9+2*i}], v[{vT+2*i}:{vT+2*i+1}], v[{p-1}:{p}], v[{8+2*i}:{9+2*i}] op_sel:[0,1,0] op_sel_hi:[1,1,1]")
            else:
                for i in range(8):
                    a(f"v_fmac_f32 v{8+i}, v{vS+t}, v{vT+i}")
        issue(vV, 24, sO)
        a(f"""
        s_add_u32 s63, s63, {STEP}
        s_add_u32 s64, s64, {STEP}
        """)

    a.label("L_loop")
    half(vKA, vVA, sA)
    if bar == 2:
        a("s_barrier")
    half(vKB, vVB, sB)
    if bar:
        a("s_barrier")
    a(f"""
    s_sub_u32 s62, s62, 1
    s_cmp_lg_u32 s62, 0
    s_cbranch_scc1 L_loop
    """)
    a.label("L_loop_done")
    if stamp:
        a("""
        s_memrealtime s[94:95]
        s_waitcnt lgkmcnt(0)
        v_mov_b32 v20, s88
        v_mov_b32 v21, s90
        v_mov_b32 v22, s92
        v_mov_b32 v23, s94
        s_lshl_b32 s82, s2, 4
        s_add_u32 s82, s82, s56
        s_lshl_b32 s82, s82, 4
        s_add_u32 s82, s82, 0xc00000
        v_mov_b32 v3, 0
        buffer_store_dwordx4 v[20:23], v3, s[36:39], s82 offen
        s_nop 1
        """)
    NOUT = HGW * 512
    EPT = max(1, NOUT // NTH)
    NACT = NOUT // EPT
    a(f"""
    s_waitcnt vmcnt(0)
    v_lshlrev_b32 v3, 1, v1
    s_lshl_b32 s82, s56, 11
    v_add_u32 v3, s82, v3
    ds_write_b128 v3, v[8:11]
    ds_write_b128 v3, v[12:15] offset:16
    v_lshrrev_b32 v3, 8, v1
    v_lshlrev_b32 v3, 3, v3
    s_lshl_b32 s82, s56, 5
    s_add_u32 s82, s82, {lds_ml}
    v_add_u32 v3, s82, v3
    ds_write_b64 v3, v[16:17]
    s_waitcnt lgkmcnt(0)
    s_barrier
    """)
    if NACT < NTH:
        a(f"""
        s_cmp_ge_u32 s56, {NACT//64}
        s_cbranch_scc1 {'L_pub_done' if fused else 'L_main_end'}
        """)
    vM = 20
    vO = 20 + 2 * P
    vO += vO % 2
    if EPT >= 4:
        vO = (vO + 3) // 4 * 4
    assert vO + P * EPT <= nvgpr
    a(f"""
    v_lshlrev_b32 v3, {log2i(EPT)+2}, v0
    v_lshrrev_b32 v4, 9, v3
    v_lshlrev_b32 v5, 3, v4
    v_add_u32 v5, {lds_ml}, v5
    """)
    for p in range(P):
        a(f"ds_read_b64 v[{vM+2*p}:{vM+2*p+1}], v5 offset:{p*HGW*32}")
    for p in range(P):
        r = vO + p * EPT
        if EPT == 8:
            a(f"ds_read_b128 v[{r}:{r+3}], v3 offset:{p*HGW*2048}")
            a(f"ds_read_b128 v[{r+4}:{r+7}], v3 offset:{p*HGW*2048+16}")
        elif EPT == 4:
            a(f"ds_read_b128 v[{r}:{r+3}], v3 offset:{p*HGW*2048}")
        elif EPT == 2:
            a(f"ds_read_b64 v[{r}:{r+1}], v3 offset:{p*HGW*2048}")
        else:
            a(f"ds_read_b32 v{r}, v3 offset:{p*HGW*2048}")
    a(f"s_waitcnt lgkmcnt({min(P*(2 if EPT==8 else 1),15)})")
    a(f"v_mov_b32 v16, v{vM}")
    for p in range(1, P):
        a(f"v_max_f32 v16, v16, v{vM+2*p}")
    a("v_mul_f32 v6, s60, v16")
    for p in range(P):
        a(f"v_fma_f32 v{vM+2*p}, v{vM+2*p}, s60, -v6")
    for p in range(P):
        a(f"v_exp_f32 v{vM+2*p}, v{vM+2*p}")
    a("s_nop 0")
    a(f"v_mul_f32 v17, v{vM}, v{vM+1}")
    for p in range(1, P):
        a(f"v_fmac_f32 v17, v{vM+2*p}, v{vM+2*p+1}")
    a("s_waitcnt lgkmcnt(0)")
    for e in range(EPT):
        a(f"v_mul_f32 v{8+e}, v{vM}, v{vO+e}")
    for p in range(1, P):
        for e in range(EPT):
            a(f"v_fmac_f32 v{8+e}, v{vM+2*p}, v{vO+p*EPT+e}")
    a(f"""
    s_lshl_b32 s82, s47, 14
    s_lshl_b32 s83, s48, {log2i(HGW)+11}
    s_add_u32 s82, s82, s83
    """)
    if EPT == 8:
        a(f"buffer_store_dwordx4 v[8:11], v3, s[36:39], s82 offen {stf}")
        a(f"buffer_store_dwordx4 v[12:15], v3, s[36:39], s82 offen offset:16 {stf}")
    elif EPT == 4:
        a(f"buffer_store_dwordx4 v[8:11], v3, s[36:39], s82 offen {stf}")
    elif EPT == 2:
        a(f"buffer_store_dwordx2 v[8:9], v3, s[36:39], s82 offen {stf}")
    else:
        a(f"buffer_store_dword v8, v3, s[36:39], s82 offen {stf}")
    a(f"""
    v_and_b32 v5, 511, v3
    v_cmp_eq_u32 vcc, 0, v5
    s_lshl_b32 s83, s48, {log2i(HGW)+2}
    v_add_u32 v4, s83, v4
    v_mul_u32_u24 v4, {NS*8}, v4
    s_lshl_b32 s82, s47, 3
    s_add_u32 s82, s82, 0x{ML_OFF:x}
    """)
    if not fused:
        a(f"""
        s_mul_i32 s83, s49, {32*NS*8}
        s_sub_u32 s86, {32*NS*8}, s83
        s_add_u32 s86, s86, s82
        s_add_u32 s82, s82, s83
        v_mov_b32 v18, 0xf1800000
        v_mov_b32 v19, 0
        """)
    a(f"""
    s_and_saveexec_b64 s[84:85], vcc
    s_cbranch_execz {'L_pub_rest' if fused else 'L_main_end'}
    buffer_store_dwordx2 v[16:17], v4, s[36:39], s82 offen {stf}
    """)
    if not fused:
        a(f"buffer_store_dwordx2 v[18:19], v4, s[36:39], s86 offen {stf}")
    if fused:
        nvgpr = max(nvgpr, emit_fused_tail(a, NS, NW, HGW, lds_bytes))
    a.label("L_main_end")
    a("s_endpgm")

    main_text = a.text()
    NG = 16
    NI = (NS + NG - 1) // NG
    assert NS % NG == 0
    a.lines.append(".p2align 8")
    a.label("pa_merge_kernel")
    vML = 8
    vOO = vML + 2 * NI
    vOO = (vOO + 3) // 4 * 4
    a(f"""
    s_cmp_ge_u32 s2, 64
    s_cbranch_scc1 L_mrg_end
    s_load_dwordx2 s[14:15], s[0:1], 40
    s_load_dwordx2 s[18:19], s[0:1], 56
    v_lshrrev_b32 v2, 5, v0
    v_and_b32 v1, 31, v0
    v_lshlrev_b32 v3, 14, v2
    v_lshl_add_u32 v3, v1, 4, v3
    v_lshlrev_b32 v4, 3, v2
    s_mov_b32 s38, 0x{WS_BYTES:x}
    s_mov_b32 s39, 0x00020000
    s_mov_b32 s30, 16384
    s_mov_b32 s31, 0x00020000
    s_mov_b32 s60, 0x{f32bits(SCALE_LOG2E):08x}
    s_and_b32 s58, s2, 31
    s_lshl_b32 s82, s58, 9
    s_mul_i32 s83, s2, {NS*8}
    s_add_u32 s83, s83, 0x{ML_OFF:x}
    s_waitcnt lgkmcnt(0)
    s_mov_b32 s36, s18
    s_and_b32 s37, s19, 0xffff
    s_mov_b32 s28, s14
    s_and_b32 s29, s15, 0xffff
    """)
    for i in range(NI):
        a(f"buffer_load_dwordx2 v[{vML+2*i}:{vML+2*i+1}], v4, s[36:39], s83 offen offset:{NG*i*8}")
    for i in range(NI):
        a(f"""
        buffer_load_dwordx4 v[{vOO+4*i}:{vOO+4*i+3}], v3, s[36:39], s82 offen
        s_add_u32 s82, s82, {NG*16384}
        """)
    a(f"s_waitcnt vmcnt({NI})")
    R = vOO + 4 * NI
    R = (R + 3) // 4 * 4
    a(f"v_mov_b32 v{R+4}, v{vML}")
    for i in range(1, NI):
        a(f"v_max_f32 v{R+4}, v{R+4}, v{vML+2*i}")
    a(f"v_mul_f32 v6, s60, v{R+4}")
    for i in range(NI):
        a(f"v_fma_f32 v{vML+2*i}, v{vML+2*i}, s60, -v6")
    for i in range(NI):
        a(f"v_exp_f32 v{vML+2*i}, v{vML+2*i}")
    a("s_nop 0")
    a(f"v_mul_f32 v{R+5}, v{vML}, v{vML+1}")
    a("s_waitcnt vmcnt(0)")
    for e in range(4):
        a(f"v_mul_f32 v{R+e}, v{vML}, v{vOO+e}")
    for i in range(1, NI):
        a(f"v_fmac_f32 v{R+5}, v{vML+2*i}, v{vML+2*i+1}")
        for e in range(4):
            a(f"v_fmac_f32 v{R+e}, v{vML+2*i}, v{vOO+4*i+e}")
    a(f"""
    v_lshlrev_b32 v3, 4, v0
    ds_write_b128 v3, v[{R}:{R+3}]
    v_lshlrev_b32 v4, 3, v2
    ds_write_b64 v4, v[{R+4}:{R+5}] offset:8192
    s_waitcnt lgkmcnt(0)
    s_barrier
    v_cmp_gt_u32 vcc, 32, v0
    s_and_saveexec_b64 s[84:85], vcc
    s_cbranch_execz L_mrg_end
    v_mov_b32 v4, 0
    """)
    vM2 = 8
    vO2 = vM2 + 2 * NG
    for g in range(NG):
        a(f"ds_read_b64 v[{vM2+2*g}:{vM2+2*g+1}], v4 offset:{8192+8*g}")
    for g in range(NG):
        a(f"ds_read_b128 v[{vO2+4*g}:{vO2+4*g+3}], v3 offset:{512*g}")
    a("s_waitcnt lgkmcnt(0)")
    a(f"v_mov_b32 v5, v{vM2}")
    for g in range(1, NG):
        a(f"v_max_f32 v5, v5, v{vM2+2*g}")
    a(f"v_mul_f32 v6, s60, v5")
    for g in range(NG):
        a(f"v_fma_f32 v{vM2+2*g}, v{vM2+2*g}, s60, -v6")
    for g in range(NG):
        a(f"v_exp_f32 v{vM2+2*g}, v{vM2+2*g}")
    a("s_nop 0")
    a(f"v_mul_f32 v7, v{vM2}, v{vM2+1}")
    for e in range(4):
        a(f"v_mul_f32 v{vO2+e}, v{vM2}, v{vO2+e}")
    for g in range(1, NG):
        a(f"v_fmac_f32 v7, v{vM2+2*g}, v{vM2+2*g+1}")
        for e in range(4):
            a(f"v_fmac_f32 v{vO2+e}, v{vM2+2*g}, v{vO2+4*g+e}")
    a(f"""
    v_rcp_f32 v7, v7
    s_nop 0
    v_mul_f32 v{vO2}, v{vO2}, v7
    v_mul_f32 v{vO2+1}, v{vO2+1}, v7
    v_mul_f32 v{vO2+2}, v{vO2+2}, v7
    v_mul_f32 v{vO2+3}, v{vO2+3}, v7
    v_cvt_pk_bf16_f32 v4, v{vO2}, v{vO2+1}
    v_cvt_pk_bf16_f32 v5, v{vO2+2}, v{vO2+3}
    v_lshlrev_b32 v3, 3, v0
    s_lshl_b32 s82, s2, 8
    buffer_store_dwordx2 v[4:5], v3, s[28:31], s82 offen
    """)
    a.label("L_mrg_end")
    a("s_endpgm")
    nv2 = max(R + 6, vO2 + 4 * NG)

    def kd(name, nv):
        nv = (nv + 3) // 4 * 4
        return f""".amdhsa_kernel {name}
  .amdhsa_next_free_vgpr {nv}
  .amdhsa_next_free_sgpr 96
  .amdhsa_accum_offset {nv}
  .amdhsa_group_segment_fixed_size 0
  .amdhsa_kernarg_size 64
  .amdhsa_user_sgpr_count 2
  .amdhsa_user_sgpr_kernarg_segment_ptr 1
  .amdhsa_system_sgpr_workgroup_id_x 1
.end_amdhsa_kernel
"""

    out = HEADER
    out += f"; config: NWG={NWG} NW={NW} HGW={HGW} T={T} ldf='{ldf}' usepk={usepk} fused={fused} bar={bar} wts={wts} stf='{stflag}'\n"
    if fused:
        out += f"; @launch grid=({NWG},1,1) block=({NTH},1,1) lds={lds_bytes+16}\n"
        out += f""".amdgcn_target "amdgcn-amd-amdhsa--gfx950"
.text
.globl {MAIN}
.type {MAIN},@function
.p2align 8
"""
        out += main_text
        out += """.section .rodata,"a"
.p2align 6
"""
        out += kd(MAIN, nvgpr)
        return out
    out += f"; @launch kernel=pa_main_kernel grid=({NWG},1,1) block=({NTH},1,1) lds={lds_bytes}\n"
    out += f"; @launch kernel=pa_merge_kernel grid=(64,1,1) block=(512,1,1) lds={8192+128}\n"
    out += """.amdgcn_target "amdgcn-amd-amdhsa--gfx950"
.text
.globl pa_main_kernel
.globl pa_merge_kernel
.type pa_main_kernel,@function
.type pa_merge_kernel,@function
.p2align 8
"""
    out += a.text()
    out += """.section .rodata,"a"
.p2align 6
"""
    out += kd("pa_main_kernel", nvgpr)
    out += ".p2align 6\n"
    out += kd("pa_merge_kernel", nv2)
    return out


if __name__ == "__main__":
    import argparse
    ap = argparse.ArgumentParser()
    ap.add_argument("-o", default="standalone__paged_block_table_kv_pagedattention__decode.s")
    ap.add_argument("--NWG", type=int, default=256)
    ap.add_argument("--NW", type=int, default=16)
    ap.add_argument("--HGW", type=int, default=8)
    ap.add_argument("--T", type=int, default=4)
    ap.add_argument("--ldf", default="")
    ap.add_argument("--usepk", action="store_true")
    ap.add_argument("--stamp", action="store_true")
    ap.add_argument("--fused", action="store_true")
    ap.add_argument("--bar", type=int, default=0)
    ap.add_argument("--wts", default="")
    ap.add_argument("--stf", default="")
    args = ap.parse_args()
    s = gen(args.NWG, args.NW, args.HGW, args.T, args.ldf, args.usepk, args.stamp, args.fused, args.bar, [float(x) for x in args.wts.split(',')] if args.wts else None, args.stf)
    open(args.o, "w").write(s)
```
